```python
import torch

def _softmax(x, axis=-1):
    return torch.softmax(x, dim=axis)
def _gelu(x):
    return torch.nn.functional.gelu(x, approximate="tanh")
def _silu(x):
    return torch.nn.functional.silu(x)
def _sigmoid(x):
    return torch.sigmoid(x)
def _layernorm(x, axis=-1, eps=1e-5):
    m = x.mean(dim=axis, keepdim=True)
    v = x.var(dim=axis, keepdim=True, unbiased=False)
    return (x - m) / torch.sqrt(v + eps)
def _scatter_add(tgt, idx, src, axis=0):
    return tgt.clone().index_add_(axis, idx, src)
def _segment_sum(src, seg, n):
    out = torch.zeros((n,) + src.shape[1:], dtype=src.dtype)
    return out.index_add_(0, seg, src)
def _pad(x, pw):
    flat = tuple(v for pair in reversed(pw) for v in pair)
    return torch.nn.functional.pad(x, flat)

kernel_name = 'sequential_preLN__compressed_kv_cla__glu_gated_bilinear__prompt'

def setup_inputs():

    _w = (lambda a: (lambda t: t.to(torch.bfloat16) if t.is_floating_point() else t)(torch.as_tensor(a)))
    def _A_setup():
        B, H, Sq, Sk, D, M = 1, 32, 2048, 2048, 128, 512
        Dc = 4 * D
        return {
            "x": _w((lambda *s: torch.randn(*s, dtype=torch.bfloat16) * 0.05)(B, Sq, M)),
            "c_kv": _w((lambda *s: torch.randn(*s, dtype=torch.bfloat16) * 0.4)(B, Sk, Dc)),
            "w_q": _w((lambda *s: torch.randn(*s, dtype=torch.bfloat16) * 1.6)(M, H, D) * (M ** -0.5)),
            "w_uk": _w((lambda *s: torch.randn(*s, dtype=torch.bfloat16) * 1.6)(Dc, H, D) * (Dc ** -0.5)),
            "w_uv": _w((lambda *s: torch.randn(*s, dtype=torch.bfloat16) * 0.4)(Dc, H, D) * (Dc ** -0.5)),
            "w_o": _w((lambda *s: torch.randn(*s, dtype=torch.bfloat16) * 0.4)(H, D, M) * ((H * D) ** -0.5)),
        }
    _A_in = _A_setup()

    def _B_setup():
        B, S, D, F = 1, 2048, 512, 1792
        return {
            "x": _w((lambda *s: torch.randn(*s, dtype=torch.bfloat16) * 0.05)(B, S, D)),
            "w_gate": _w((lambda *s: torch.randn(*s, dtype=torch.bfloat16) * 0.4)(D, F) * (D ** -0.5)),
            "w_up": _w((lambda *s: torch.randn(*s, dtype=torch.bfloat16) * 0.4)(D, F) * (D ** -0.5)),
            "w_down": _w((lambda *s: torch.randn(*s, dtype=torch.bfloat16) * 0.4)(F, D) * (F ** -0.5)),
        }
    _B_in = _B_setup()

    return {
        "A_x": _A_in["x"],
        "A_c_kv": _A_in["c_kv"],
        "A_w_q": _A_in["w_q"],
        "A_w_uk": _A_in["w_uk"],
        "A_w_uv": _A_in["w_uv"],
        "A_w_o": _A_in["w_o"],
        "B_x": _B_in["x"],
        "B_w_gate": _B_in["w_gate"],
        "B_w_up": _B_in["w_up"],
        "B_w_down": _B_in["w_down"],
    }

def reference(A_x, A_c_kv, A_w_q, A_w_uk, A_w_uv, A_w_o, B_x, B_w_gate, B_w_up, B_w_down):
    def _A_ref(x, c_kv, w_q, w_uk, w_uv, w_o):
        B, Sq, M = x.shape[0], x.shape[1], x.shape[2]
        Sk = c_kv.shape[1]
        H, D = w_q.shape[1], w_q.shape[2]
        q = torch.einsum("bqm,mhd->bhqd", x, w_q)
        k = torch.einsum("bkc,chd->bhkd", c_kv, w_uk)
        v = torch.einsum("bkc,chd->bhkd", c_kv, w_uv)
        scores = torch.einsum("bhqd,bhkd->bhqk", q, k) * (D ** -0.5)
        off = Sk - Sq
        qi = torch.arange(Sq)[:, None]
        kj = torch.arange(Sk)[None, :]
        cmask = kj <= (qi + off)
        scores = torch.where(cmask[None, None], scores, -1e9)
        p = _softmax(scores, axis=-1)
        ctx = torch.einsum("bhqk,bhkd->bhqd", p, v)
        return torch.einsum("bhqd,hdm->bqm", ctx, w_o)

    def _B_ref(x, w_gate, w_up, w_down):
        g = torch.einsum("bsd,df->bsf", x, w_gate)
        u = torch.einsum("bsd,df->bsf", x, w_up)
        h = g * u
        return torch.einsum("bsf,fd->bsd", h, w_down)

    x = A_x
    h = x + _A_ref(_layernorm(x, axis=-1), A_c_kv, A_w_q, A_w_uk, A_w_uv, A_w_o)
    h2 = h + _B_ref(_layernorm(h, axis=-1), B_w_gate, B_w_up, B_w_down)
    return h2
```

```python
import re

def v(i, n=1):
    return f"v{i}" if n == 1 else f"v[{i}:{i+n-1}]"
def a(i, n=1):
    return f"a{i}" if n == 1 else f"a[{i}:{i+n-1}]"
def s(i, n=1):
    return f"s{i}" if n == 1 else f"s[{i}:{i+n-1}]"

_REG = re.compile(r"^(-|abs\()?([vas])(?:(\d+)|\[(\d+):(\d+)\])\)?$")
def regs_of(op):
    op = op.strip()
    m = _REG.match(op)
    if m:
        k = m.group(2)
        if m.group(3) is not None:
            lo = hi = int(m.group(3))
        else:
            lo, hi = int(m.group(4)), int(m.group(5))
        return {(k, i) for i in range(lo, hi + 1)}
    if op == "vcc": return {("vcc", 0)}
    if op == "exec": return {("exec", 0)}
    if op == "m0": return {("m0", 0)}
    return set()

TRANS = ("v_exp_f32", "v_log_f32", "v_rcp_f32", "v_rsq_f32", "v_sqrt_f32", "v_sin_f32", "v_cos_f32")

class Ins:
    def __init__(self, text):
        self.text = text
        t = text.split(";")[0].strip()
        self.label = t.endswith(":")
        parts = t.split(None, 1)
        self.op = parts[0] if parts else ""
        rest = parts[1] if len(parts) > 1 else ""
        ops = []; cur = ""; depth = 0
        for ch in rest:
            if ch in "[(": depth += 1
            if ch in "])": depth -= 1
            if ch == "," and depth == 0:
                ops.append(cur.strip()); cur = ""
            else:
                cur += ch
        if cur.strip(): ops.append(cur.strip())
        if ops:
            last = ops[-1].split()
            self.mods = last[1:]
            ops[-1] = last[0]
        else:
            self.mods = []
        self.ops = ops
        op = self.op
        self.is_mfma = op.startswith("v_mfma")
        self.is_valu = op.startswith("v_") and not self.is_mfma
        self.is_trans = any(op.startswith(x) for x in TRANS)
        self.is_ds = op.startswith("ds_")
        self.is_vmem = op.startswith("buffer_") or op.startswith("global_")
        self.is_salu = op.startswith("s_")
        R = [regs_of(o) for o in ops]
        w = set(); r = set()
        if self.label or not op:
            pass
        elif self.is_mfma:
            w = R[0]; self.srcA, self.srcB, self.srcC = R[1], R[2], R[3]; r = R[1] | R[2] | R[3]
            self.passes = 8 if "32x32" in op else 4
        elif op.startswith("v_permlane") and "swap" in op:
            w = R[0] | R[1]; r = R[0] | R[1]
        elif op.startswith("v_cmp"):
            w = R[0]; r = set().union(*R[1:])
        elif op.startswith("v_readfirstlane") or op.startswith("v_readlane"):
            w = R[0]; r = set().union(*R[1:])
        elif self.is_valu:
            w = R[0]; r = set().union(*R[1:]) if len(R) > 1 else set()
            if op.startswith("v_fmac") or op.startswith("v_dot2c") or "dpp" in op or "sdwa" in op: r |= R[0]
            if op.startswith("v_add_co") or op.startswith("v_addc_co"): w |= R[1]
        elif op.startswith("ds_read") or op.startswith("ds_bpermute") or op.startswith("ds_swizzle"):
            w = R[0]; r = set().union(*R[1:])
        elif op.startswith("ds_write"):
            r = set().union(*R)
        elif self.is_vmem and "load" in op:
            if "lds" in self.mods or "_lds_" in op:
                r = set().union(*R) | {("m0", 0)}
            else:
                w = R[0]; r = set().union(*R[1:])
        elif self.is_vmem:
            r = set().union(*R) if R else set()
        elif self.is_salu:
            if op.startswith("s_cmp") or op.startswith("s_cbranch") or op in ("s_waitcnt", "s_barrier", "s_nop", "s_branch", "s_setprio", "s_endpgm", "s_sleep"):
                r = set().union(*R) if R else set()
            else:
                w = R[0] if R else set(); r = set().union(*R[1:]) if len(R) > 1 else set()
        self.w, self.r = w, r
    def states(self):
        if self.label or not self.op: return 0
        if self.op == "s_nop": return int(self.ops[0], 0) + 1
        return 1

def check_hazards(lines, name=""):
    ins = [Ins(l) for l in lines if "; ALT" not in l and l.strip() and not l.strip().startswith(";") and not l.strip().startswith(".")]
    errs = []
    n = len(ins)
    for i, p in enumerate(ins):
        if p.label or not p.op: continue
        dist = 0
        for j in range(i + 1, min(n, i + 40)):
            c = ins[j]
            if c.label or not c.op: continue
            need = 0
            vw = {x for x in p.w if x[0] in "va" and x[0] != "vcc"}
            if p.is_mfma:
                T = {8: (12, 10, 7), 4: (8, 6, 3)}[p.passes]
                if c.is_mfma:
                    if p.w & (c.srcA | c.srcB): need = max(need, T[0])
                    if p.w & c.srcC and not (p.w == c.srcC and p.passes == c.passes): need = max(need, T[1])
                    if (p.w & c.w) and not (p.w & c.srcC): need = max(need, T[1])
                elif c.is_valu or c.is_ds or c.is_vmem:
                    if p.w & (c.r | c.w): need = max(need, T[0])
                    if c.is_valu and (p.srcC & c.w): need = max(need, T[2])
            elif p.is_valu:
                if c.is_mfma and (vw & c.r): need = max(need, 2)
                if p.is_trans and c.is_valu and not c.is_trans and (p.w & c.r): need = max(need, 1)
                if p.is_trans and c.is_mfma and (p.w & c.r): need = max(need, 2)
                if c.op.startswith("v_permlane") and (vw & c.r): need = max(need, 2)
                if "dpp" in c.op and (vw & c.r): need = max(need, 2)
                if (c.op.startswith("v_readfirstlane") or c.op.startswith("v_readlane")) and (vw & c.r): need = max(need, 1)
                sw = {x for x in p.w if x[0] in ("s", "vcc")}
                if sw:
                    cr = set(c.r)
                    if c.op.startswith("v_cndmask") and len(c.ops) == 4 and c.ops[3] == "vcc": cr |= {("vcc", 0)}
                    if c.is_valu and (sw & cr): need = max(need, 2)
                    if c.is_vmem and (sw & cr): need = max(need, 5)
                if ("sdwa" in p.op or "op_sel" in " ".join(p.mods)) and c.is_valu and (p.w & c.r) and "pk" not in p.op: need = max(need, 1)
            elif p.is_salu:
                if ("m0", 0) in p.w and c.is_vmem and ("m0", 0) in c.r: need = max(need, 1)
            elif p.is_vmem and "store" in p.op and ("x4" in p.op or "x3" in p.op):
                data = regs_of(p.ops[0]) if p.op.startswith("buffer") else regs_of(p.ops[1])
                if c.is_valu and (data & c.w): need = max(need, 2)
                elif data & c.w: need = max(need, 1)
            if need > dist:
                errs.append(f"{name}: hazard need {need} have {dist}:\n   {p.text.strip()}\n   {c.text.strip()}")
            dist += c.states()
            if dist >= 20: break
    return errs

COST = lambda t: (2.0 if any(t.strip().startswith(x) for x in TRANS) else 1.0)

def interleave(mfmas, streams, ngaps=None):
    n = len(mfmas)
    gaps = [[] for _ in range(n)]
    for items, g0, g1 in streams:
        items = [[x] if isinstance(x, str) else list(x) for x in items]
        tot = sum(sum(COST(t) for t in it) for it in items)
        acc = 0.0
        for it in items:
            c = sum(COST(t) for t in it)
            pos = g0 + (acc + 0.0) / tot * (g1 - g0)
            g = min(int(pos), g1 - 1)
            gaps[g].append((pos, it))
            acc += c
    out = []
    for i, m in enumerate(mfmas):
        if isinstance(m, (list, tuple)): out.extend(m)
        else: out.append(m)
        for pos, it in sorted(gaps[i], key=lambda x: x[0]):
            out.extend(it)
    return out

def icost(t, dma_cost=4.0):
    t = t.strip()
    if t.endswith(":"): return 0.0
    if any(t.startswith(x) for x in TRANS): return 2.0
    if t.startswith("buffer_") or t.startswith("global_"): return dma_cost
    if t.startswith("s_barrier"): return 3.0
    return 1.0

def schedule(mfmas, fixed, flows, dma_cost=4.0, pre=None):
    n = len(mfmas)
    gaps = [[] for _ in range(n)]
    load = [0.0] * n
    pre = pre or {}
    for g, lines in fixed:
        gaps[g].extend(lines)
        load[g] += sum(icost(t, dma_cost) for t in lines)
    for i, lines in pre.items():
        if i > 0: load[i - 1] += sum(icost(t, dma_cost) for t in lines)
    for items, g0, g1 in flows:
        items = [[x] if isinstance(x, str) else list(x) for x in items]
        costs = [sum(icost(t, dma_cost) for t in it) for it in items]
        tot = sum(costs)
        lo, hi = 0.0, 100.0
        for _ in range(50):
            mid = (lo + hi) / 2
            cap = sum(max(0.0, mid - load[g]) for g in range(g0, g1))
            if cap >= tot: hi = mid
            else: lo = mid
        level = hi
        cum = 0.0; placed = 0.0; k = 0
        for g in range(g0, g1):
            cum += max(0.0, level - load[g])
            while k < len(items) and (placed + costs[k] / 2 <= cum + 1e-6 or g == g1 - 1):
                gaps[g].extend(items[k]); load[g] += costs[k]; placed += costs[k]; k += 1
    out = []
    for i, m in enumerate(mfmas):
        out.extend(pre.get(i, []))
        if isinstance(m, (list, tuple)): out.extend(m)
        else: out.append(m)
        out.extend(gaps[i])
    return out, load
```

```python
from asmlib import *
MF = "v_mfma_f32_32x32x16_bf16"
KA_X, KA_CKV, KA_WQ, KA_WUK, KA_WUV, KA_WO, KA_BX, KA_WG, KA_WU, KA_WD, KA_OUT, KA_DBG, KA_WS = [8 * i for i in range(13)]
WS_K = 0x0000000
WS_V = 0x1000000
WS_XN = 0x2000000
WS_Q = 0x3000000
WS_CTX = 0x4000000
WS_H = 0x5000000
WS_ST = 0x5200000
WS_CS = 0x5300000
WS_HH = 0x6000000
WS_STAMP = 0x8000000

def kernel(name, lines, vgpr=512, accum=256, sgpr=96):
    body = "\n".join((l if l.rstrip().endswith(":") or l.startswith(".") else "    " + l) for l in lines)
    return f""".text
.globl {name}
.p2align 8
.type {name},@function
{name}:
{body}
    s_endpgm
.section .rodata,"a"
.p2align 6
.amdhsa_kernel {name}
  .amdhsa_next_free_vgpr {vgpr}
  .amdhsa_next_free_sgpr {sgpr}
  .amdhsa_accum_offset {accum}
  .amdhsa_group_segment_fixed_size 0
  .amdhsa_kernarg_size 104
  .amdhsa_user_sgpr_count 2
  .amdhsa_user_sgpr_kernarg_segment_ptr 1
  .amdhsa_system_sgpr_workgroup_id_x 1
  .amdhsa_float_denorm_mode_32 3
.end_amdhsa_kernel
"""

def srd(d, b, off, size):
    L = []
    if off is None or off == 0:
        L += [f"s_mov_b32 s{d}, s{b}", f"s_mov_b32 s{d+1}, s{b+1}"]
    else:
        o = off if isinstance(off, str) else hex(off)
        L += [f"s_add_u32 s{d}, s{b}, {o}", f"s_addc_u32 s{d+1}, s{b+1}, 0"]
    L += [f"s_mov_b32 s{d+2}, {hex(size)}", f"s_mov_b32 s{d+3}, 0x00020000"]
    return L

def resolve_lgkm(lines, prefix=None):
    pre = list(prefix) if prefix is not None else []
    allv = pre + list(lines)
    out = []
    for idx in range(len(pre), len(allv)):
        l = allv[idx]
        if l.startswith("WAITL"):
            tag = l.split()[1]
            n = 0; found = False
            for j in range(idx - 1, -1, -1):
                t = allv[j]
                if t.startswith("ds_"):
                    if t.rstrip().endswith("RD:" + tag):
                        found = True; break
                    n += 1
            assert found, tag
            n = min(n, 15)
            out.append(f"s_waitcnt lgkmcnt({n})")
        else:
            out.append(l)
    return out

def wave_reduce_add(regs, tmp):
    L = []
    for mod in ("quad_perm:[1,0,3,2]", "quad_perm:[2,3,0,1]", "row_half_mirror", "row_mirror"):
        L.append("s_nop 1")
        for r in regs:
            L.append(f"v_add_f32_dpp {v(r)}, {v(r)}, {v(r)} {mod} row_mask:0xf bank_mask:0xf")
    for sw in ("v_permlane16_swap_b32", "v_permlane32_swap_b32"):
        for r, t in zip(regs, tmp):
            L.append(f"v_mov_b32 {v(t)}, {v(r)}")
        L.append("s_nop 1")
        for r, t in zip(regs, tmp):
            L.append(f"{sw} {v(r)}, {v(t)}")
        L.append("s_nop 1")
        for r, t in zip(regs, tmp):
            L.append(f"v_add_f32 {v(r)}, {v(r)}, {v(t)}")
    return L

def fold_m0(items):
    first = []
    out = []
    for it in items:
        if it[0].startswith("s_mov_b32 m0") or it[0].startswith("s_add_u32 m0"):
            if out: out[-1] = out[-1] + it
            else: first += it
        else:
            out.append(list(it))
    return first, out

def fix_m0(lines):
    out = []
    for l in lines:
        if out and " lds" in l and l.startswith("buffer_load") and (out[-1].startswith("s_mov_b32 m0") or out[-1].startswith("s_add_u32 m0")):
            out.append("s_nop 0")
        out.append(l)
    return out
```

```python
from common import *

def gen_k1(opts={}):
    L = []
    E = L.append
    def acc(t): return v(t * 16, 16) if t < 14 else a(64 + (t - 14) * 16, 16)
    def frag(buf, i): return buf * 32 + i * 4
    VA = 224
    VB = 228
    VDA = 230
    VDB = 234
    VL = 238
    T = 240
    SA, SB, SKO, SVO, SX, SXO = 8, 12, 16, 20, 24, 28
    S_W, S_HEAD, S_KB = 33, 34, 35
    S_AO, S_AO2, S_BO, S_BO2 = 36, 37, 38, 39
    S_M0 = 40
    S_CNT = 48
    E("s_cmp_ge_u32 s2, 256")
    E("s_cbranch_scc1 K1_done")
    E(f"s_load_dwordx4 s[52:55], s[0:1], {KA_X}")
    E(f"s_load_dwordx4 s[56:59], s[0:1], {KA_WUK}")
    E(f"s_load_dwordx2 s[60:61], s[0:1], {KA_WS}")
    E(f"v_and_b32 v{VL}, 63, v0")
    E(f"v_lshrrev_b32 v{T}, 6, v0")
    E("s_and_b32 s3, s2, 7")
    E(f"v_readfirstlane_b32 s{S_W}, v{T}")
    E("s_lshl_b32 s3, s3, 2")
    E("s_lshr_b32 s4, s2, 3")
    E("s_and_b32 s4, s4, 3")
    E(f"s_add_u32 s{S_HEAD}, s3, s4")
    E(f"s_lshr_b32 s{S_KB}, s2, 5")
    lane = VL
    E(f"v_lshrrev_b32 v{T}, 3, v{lane}")
    E(f"v_lshrrev_b32 v{T+1}, 4, v{lane}")
    E(f"v_and_b32 v{T+2}, 7, v{lane}")
    E(f"v_xor_b32 v{T+2}, v{T+2}, v{T+1}")
    E(f"v_lshlrev_b32 v{T+2}, 4, v{T+2}")
    E(f"v_lshl_add_u32 v{T+3}, v{T}, 10, v{T+2}")
    E(f"s_lshl_b32 s3, s{S_W}, 16")
    E(f"v_add_u32 v{VDA}, s3, v{T+3}")
    E(f"v_xor_b32 v{T+4}, 64, v{VDA}")
    E(f"v_add_u32 v{VDA+1}, {8192 - 1024}, v{T+4}")
    E(f"v_add_u32 v{VDA+2}, {2 * (8192 - 1024)}, v{VDA}")
    E(f"v_add_u32 v{VDA+3}, {3 * (8192 - 1024)}, v{T+4}")
    E(f"v_and_b32 v{T+2}, 15, v{lane}")
    E(f"v_lshlrev_b32 v{T+3}, 2, v{T+1}")
    E(f"v_xor_b32 v{T+2}, v{T+2}, v{T+3}")
    E(f"v_lshlrev_b32 v{T+2}, 4, v{T+2}")
    E(f"v_lshl_add_u32 v{T+3}, v{T+1}, 13, v{T+2}")
    E(f"s_and_b32 s3, s{S_W}, 1")
    E(f"s_lshl_b32 s3, s3, 18")
    E(f"v_add_u32 v{VDB}, s3, v{T+3}")
    for q in range(1, 4):
        E(f"v_add_u32 v{VDB+q}, {q * (4 * 8192 - 1024)}, v{VDB}")
    E(f"v_and_b32 v{T}, 31, v{lane}")
    E(f"v_lshrrev_b32 v{T+2}, 5, v{lane}")
    E(f"v_bfe_u32 v{T+3}, v{lane}, 1, 3")
    E(f"v_xor_b32 v{T+3}, v{T+3}, v{T+2}")
    E(f"v_lshlrev_b32 v{T+3}, 4, v{T+3}")
    E(f"v_lshl_add_u32 v{T+3}, v{T}, 7, v{T+3}")
    E(f"s_and_b32 s3, s{S_W}, 1")
    E(f"s_lshl_b32 s3, s3, 14")
    E(f"v_add_u32 v{VA}, s3, v{T+3}")
    for ks in range(1, 4):
        E(f"v_xor_b32 v{VA+ks}, {ks * 32}, v{VA}")
    E(f"v_bfe_u32 v{T}, v{lane}, 2, 2")
    E(f"v_lshl_add_u32 v{T+3}, v{T+2}, 3, v{T}")
    E(f"v_lshlrev_b32 v{T+3}, 8, v{T+3}")
    E(f"v_bfe_u32 v{T+4}, v{lane}, 4, 1")
    E(f"v_lshl_add_u32 v{T+3}, v{T+4}, 5, v{T+3}")
    E(f"v_and_b32 v{T+4}, 3, v{lane}")
    E(f"v_lshl_add_u32 v{T+3}, v{T+4}, 3, v{T+3}")
    E(f"s_and_b32 s3, s{S_W}, 2")
    E(f"v_xor_b32 v{T}, s3, v{T}")
    E(f"v_lshl_add_u32 v{T+3}, v{T}, 6, v{T+3}")
    E(f"v_add_u32 v{VB}, 0x10000, v{T+3}")
    E(f"v_xor_b32 v{VB+1}, 64, v{VB}")
    E(f"v_lshlrev_b32 v{VL}, 4, v{lane}")
    E("s_waitcnt lgkmcnt(0)")
    L += srd(SX, 52, 0, 0x200000)
    E(f"s_lshl_b32 s3, s2, 13")
    E(f"s_lshl_b32 s4, s{S_W}, 11")
    E(f"s_add_u32 s3, s3, s4")
    XR = 0
    E(f"buffer_load_dwordx4 v[0:3], v{VL}, {s(SX,4)}, s3 offen")
    E(f"buffer_load_dwordx4 v[4:7], v{VL}, {s(SX,4)}, s3 offen offset:1024")
    L += srd(SA, 54, 0, 0x200000)
    E(f"s_cmp_ge_u32 s{S_W}, 2")
    E(f"s_cselect_b32 s{SB}, s58, s56")
    E(f"s_cselect_b32 s{SB+1}, s59, s57")
    E(f"s_mov_b32 s{SB+2}, 0x400000")
    E(f"s_mov_b32 s{SB+3}, 0x00020000")
    E(f"s_lshl_b32 s{S_AO}, s{S_KB}, 18")
    E(f"s_add_u32 s{S_AO2}, s{S_AO}, 0x8000")
    E(f"s_lshl_b32 s{S_BO}, s{S_HEAD}, 8")
    E(f"s_add_u32 s{S_BO2}, s{S_BO}, {16 * 8192}")
    E(f"s_lshl_b32 s3, s{S_W}, 13")
    for i in range(8):
        E(f"s_add_u32 s{S_M0+i}, s3, {(i // 2) * 32768 + (i % 2) * 4096}")
    def dma(slot):
        it = []
        for half in (0, 1):
            it.append([f"s_mov_b32 m0, s{S_M0 + slot*2 + half}"])
            for q in range(4):
                it.append([f"buffer_load_dwordx4 v{VDA+q}, {s(SA,4)}, s{S_AO2 if half else S_AO} offen offset:{q*1024} lds"])
        for half in (0, 1):
            it.append([f"s_mov_b32 m0, s{S_M0 + 4 + slot*2 + half}"])
            for q in range(4):
                it.append([f"buffer_load_dwordx4 v{VDB+q}, {s(SB,4)}, s{S_BO2 if half else S_BO} offen offset:{q*1024} lds"])
        it.append([f"s_add_u32 s{S_AO}, s{S_AO}, 128"])
        it.append([f"s_add_u32 s{S_AO2}, s{S_AO2}, 128"])
        it.append([f"s_add_u32 s{S_BO}, s{S_BO}, {64 * 8192}"])
        it.append([f"s_add_u32 s{S_BO2}, s{S_BO2}, {64 * 8192}"])
        return it
    for slot in (0, 1):
        for it in dma(slot):
            L += it
            if "m0" in it[0]: E("s_nop 0")
    E(f"s_lshl_b32 s3, s{S_HEAD}, 19")
    L += srd(SKO, 60, "s3", 0x80000)
    E(f"s_add_u32 s3, s3, {hex(WS_V)}")
    L += srd(SVO, 60, "s3", 0x80000)
    L += srd(SXO, 60, WS_XN, 0x200000)
    E("s_waitcnt vmcnt(32)")
    X = 16
    for r in range(2):
        for j in range(4):
            E(f"v_lshlrev_b32 v{X + r*8 + 2*j}, 16, v{r*4 + j}")
            E(f"v_and_b32 v{X + r*8 + 2*j + 1}, 0xffff0000, v{r*4 + j}")
    for r in range(2):
        E(f"v_add_f32 v{32+r}, v{X+r*8}, v{X+r*8+1}")
    for j in range(2, 8):
        for r in range(2):
            E(f"v_add_f32 v{32+r}, v{32+r}, v{X+r*8+j}")
    L += wave_reduce_add([32, 33], [34, 35])
    for r in range(2):
        E(f"v_mul_f32 v{32+r}, {hex(0x3b000000)}, v{32+r}")
    for j in range(8):
        for r in range(2):
            E(f"v_sub_f32 v{X+r*8+j}, v{X+r*8+j}, v{32+r}")
    for r in range(2):
        E(f"v_mul_f32 v{32+r}, v{X+r*8}, v{X+r*8}")
    for j in range(1, 8):
        for r in range(2):
            E(f"v_fmac_f32 v{32+r}, v{X+r*8+j}, v{X+r*8+j}")
    L += wave_reduce_add([32, 33], [34, 35])
    E(f"v_mov_b32 v36, {hex(0x3727c5ac)}")
    for r in range(2):
        E(f"v_fmac_f32 v36, 0, v36" if False else f"v_mul_f32 v{32+r}, {hex(0x3b000000)}, v{32+r}")
    for r in range(2):
        E(f"v_add_f32 v{32+r}, v{32+r}, v36")
    for r in range(2):
        E(f"v_rsq_f32 v{32+r}, v{32+r}")
    E("s_nop 0")
    for j in range(8):
        for r in range(2):
            E(f"v_mul_f32 v{X+r*8+j}, v{X+r*8+j}, v{32+r}")
    for r in range(2):
        for j in range(4):
            E(f"v_cvt_pk_bf16_f32 v{T + r*4 + j}, v{X+r*8+2*j}, v{X+r*8+2*j+1}")
    E(f"v_lshlrev_b32 v{T+8}, 5, v{VL}")
    E(f"s_lshr_b32 s3, s2, 2")
    E(f"s_lshl_b32 s3, s3, 15")
    E(f"s_and_b32 s4, s2, 3")
    E(f"s_lshl_b32 s4, s4, 7")
    E(f"s_add_u32 s3, s3, s4")
    E(f"s_lshl_b32 s4, s{S_W}, 5")
    E(f"s_add_u32 s3, s3, s4")
    E(f"buffer_store_dwordx4 {v(T,4)}, v{T+8}, {s(SXO,4)}, s3 offen")
    E(f"buffer_store_dwordx4 {v(T+4,4)}, v{T+8}, {s(SXO,4)}, s3 offen offset:16")
    for i in range(224): E(f"v_mov_b32 v{i}, 0")
    for i in range(64, 96): E(f"v_accvgpr_write_b32 a{i}, 0")
    def reads(slot, ks, buf, tag):
        r = []
        for i in range(4):
            r.append(f"ds_read_b128 {a(frag(buf, i), 4)}, v{VA+ks} offset:{slot*32768 + i*4096} ; RD:{tag}_{i}")
        for part in range(2):
            for j in range(2):
                for jj in range(2):
                    off = slot * 32768 + part * 16384 + (16 * ks + 4 * jj) * 256
                    r.append(f"ds_read_b64_tr_b16 {a(frag(buf, 4 + part*2 + j) + 2*jj, 2)}, v{VB+j} offset:{off}")
        return [r[0]] + r[4:12] + r[1:4]
    def mfmas(buf):
        m = []
        for i in range(4):
            for j in range(2):
                m.append(f"{MF} {acc(i*4+j)}, {a(frag(buf,4+j),4)}, {a(frag(buf,i),4)}, {acc(i*4+j)}")
            for j in range(2):
                m.append(f"{MF} {acc(i*4+2+j)}, {a(frag(buf,i),4)}, {a(frag(buf,6+j),4)}, {acc(i*4+2+j)}")
        return m
    E("s_waitcnt vmcnt(18)")
    E("s_barrier")
    first = reads(0, 0, 0, "s0k0")
    L += first
    E(f"s_mov_b32 s{S_CNT}, 4")
    body = []
    for slot in (0, 1):
        for ks in range(4):
            buf = ks & 1
            if ks < 3: rd = reads(slot, ks + 1, buf ^ 1, f"s{slot}k{ks+1}")
            else: rd = reads(slot ^ 1, 0, buf ^ 1, f"s{slot^1}k0")
            pre = {0: [f"WAITL s{slot}k{ks}_11"], 4: [f"WAITL s{slot}k{ks}_3"]}
            fixed = [(g, [rd[g]]) for g in range(12)]
            flows = []
            if ks == 3:
                pre[0] = ["s_waitcnt vmcnt(0) lgkmcnt(0)", "s_barrier"]
                pre.pop(4)
                f0, d = fold_m0(dma(slot))
                pre[0] = f0 + pre[0]
                fixed += [(g, d[g]) for g in range(16)]
                fixed += [(15, x) for x in d[16:]]
            if ks == 0 and slot == 0:
                flows.append(([f"s_cmp_eq_u32 s{S_CNT}, 1", f"s_cselect_b32 s{SA+2}, 0, s{SA+2}", f"s_cselect_b32 s{SB+2}, 0, s{SB+2}"], 12, 16))
            out, load = schedule(mfmas(buf), fixed, flows, dma_cost=2.0, pre=pre)
            body += out
    body += [f"s_sub_u32 s{S_CNT}, s{S_CNT}, 1", f"s_cmp_lg_u32 s{S_CNT}, 0", "s_cbranch_scc1 K1_loop"]
    body_r = fix_m0(resolve_lgkm(body, body))
    for e in check_hazards(L + body_r + body_r, "k1"): print(e)
    E(".p2align 6")
    E("K1_loop:")
    L += body_r
    ep = []
    G = ep.append
    G("s_nop 7"); G("s_nop 3")
    G(f"s_and_b32 s3, s{S_W}, 1")
    G(f"s_lshl_b32 s3, s3, 15")
    G(f"s_lshl_b32 s4, s{S_KB}, 16")
    G(f"s_add_u32 s3, s3, s4")
    G(f"s_lshr_b32 s4, s{S_W}, 1")
    G(f"s_lshl_b32 s5, s4, 12")
    G(f"s_add_u32 s5, s5, s3")
    G(f"s_lshl_b32 s6, s4, 11")
    G(f"s_add_u32 s6, s6, s3")
    G(f"s_add_u32 s7, s6, 4096")
    fl = opts.get("store_flags", "sc0 sc1")
    for i in range(4):
        for j in range(4):
            t = i * 4 + j
            if t < 14:
                b = t * 16
            else:
                b = (t - 14) * 16
                for r in range(16): G(f"v_accvgpr_read_b32 v{b + r}, a{64 + (t-14)*16 + r}")
            for half in range(2):
                for q in range(4):
                    G(f"v_cvt_pk_bf16_f32 v{b + half*8 + q}, v{b + half*8 + 2*q}, v{b + half*8 + 2*q + 1}")
                if j < 2:
                    G(f"buffer_store_dwordx4 {v(b + half*8, 4)}, v{VL}, {s(SKO,4)}, s5 offen offset:{(2*j + half)*1024} {fl}")
                else:
                    G(f"buffer_store_dwordx4 {v(b + half*8, 4)}, v{VL}, {s(SVO,4)}, s{7 if half else 6} offen offset:{(j-2)*1024} {fl}")
        if i < 3:
            G("s_add_u32 s5, s5, 8192"); G("s_add_u32 s6, s6, 8192"); G("s_add_u32 s7, s7, 8192")
    for e in check_hazards(body_r + ep, "k1ep"): print(e)
    L += ep
    E("K1_done:")
    return L
```

```python
from common import *
import struct, math

def f2u(x): return struct.unpack("<I", struct.pack("<f", x))[0]

def S(par, rb, kh): return par * 64 + (kh * 2 + rb) * 16
P01 = [128, 144]; P23 = 160
def P(par, ks, rb):
    return (P01[par] + (ks * 2 + rb) * 4) if ks < 2 else (P23 + ((ks - 2) * 2 + rb) * 4)
NEGM = [176, 192]
TMP = 208
LT = 214
LTOT = 216
VCHK = 218
V_LDS = [220, 221]
V_DMA = [222, 223]
V_L16 = 224
V_THR = 225
V_XW = 228
V_XR = 229
V_BIG = 230
T = 232
def O(rb, db): return (rb * 4 + db) * 16
A_Q = 128
def Q(rb, ds): return A_Q + (rb * 8 + ds) * 4
def F(i): return 192 + i * 4
SK, SV, SW, SXN, SQ, SC = 8, 12, 16, 20, 24, 28
S_KOFF, S_VOFF, S_TK, S_DH1, S_DH2, S_DLOFF = 32, 33, 34, 35, 36, 37
S_M0 = 40
S_THR, S_W, S_HEAD, S_I, S_N, S_BLK, S_COFF, S_SL3 = 48, 49, 50, 51, 52, 53, 54, 55
S_MSK = 60
SLOT = 32768
SPARE = 131072

def softmax_items(par, kh, first_half):
    seq = []
    pend = None
    tcur = 0
    started = {0: not first_half, 1: not first_half}
    for rb in (0, 1):
        sb = S(par, rb, kh)
        for q in range(8):
            ks = kh * 2 + q // 4
            dst = P(par, ks, rb) + (q % 4)
            t0 = TMP + tcur * 2; t1 = t0 + 1
            tcur = (tcur + 1) % 3
            e0 = f"v_exp_f32 {v(t0)}, {v(sb + 2*q)}"
            e1 = f"v_exp_f32 {v(t1)}, {v(sb + 2*q + 1)}"
            if pend is None:
                seq += [e0, e1]
            else:
                p0, p1, pd, prb = pend
                lt = LT + prb
                if not started[prb]:
                    seq += [e0, f"v_add_f32 {v(lt)}, {v(p0)}, {v(p1)}", e1, f"v_cvt_pk_bf16_f32 {v(pd)}, {v(p0)}, {v(p1)}"]
                    started[prb] = True
                else:
                    seq += [e0, f"v_add_f32 {v(lt)}, {v(lt)}, {v(p0)}", e1, f"v_add_f32 {v(lt)}, {v(lt)}, {v(p1)}",
                            f"v_cvt_pk_bf16_f32 {v(pd)}, {v(p0)}, {v(p1)}"]
            pend = (t0, t1, dst, rb)
    p0, p1, pd, prb = pend
    lt = LT + prb
    seq += [f"v_add_f32 {v(lt)}, {v(lt)}, {v(p0)}", f"v_cvt_pk_bf16_f32 {v(pd)}, {v(p0)}, {v(p1)}", f"v_add_f32 {v(lt)}, {v(lt)}, {v(p1)}"]
    return seq

def lds_read(slot, i, tag):
    return f"ds_read_b128 {a(F(i),4)}, {v(V_LDS[slot >> 1])} offset:{(slot & 1) * SLOT + i * 1024} ; RD:{tag}{i}"

def dma_items(slot, srd_, soff):
    it = []
    for half in (0, 1):
        it.append([f"s_mov_b32 m0, {s(S_M0 + slot * 2 + half)}"])
        for j in range(4):
            it.append([f"buffer_load_dwordx4 {v(V_DMA[half])}, {s(srd_,4)}, {s(soff)} offen offset:{j*1024} lds"])
    return it

def qk_mfmas(parn, cinit="negm"):
    m = []
    for kh in (0, 1):
        for ds in range(8):
            for rb in (0, 1):
                d = v(S(parn, rb, kh), 16)
                c = (v(NEGM[rb], 16) if cinit == "negm" else d) if ds == 0 else d
                m.append(f"{MF} {d}, {a(F(kh*8+ds),4)}, {a(Q(rb,ds),4)}, {c}")
    return m

def pv_mfmas(par):
    m = []
    for ks in range(4):
        for db in range(4):
            for rb in (0, 1):
                d = a(O(rb, db), 16)
                m.append(f"{MF} {d}, {a(F(ks*4+db),4)}, {v(P(par,ks,rb),4)}, {d}")
    return m

ADV = [[f"s_mov_b32 s{S_VOFF}, s{S_KOFF}", f"s_add_u32 s{S_TK}, s{S_TK}, 1"],
       [f"s_add_u32 s{S_KOFF}, s{S_KOFF}, 0x8000", f"s_cmp_eq_u32 s{S_TK}, s{S_DH1}", f"s_cselect_b32 s{S_KOFF}, s{S_DLOFF}, s{S_KOFF}"],
       [f"s_cmp_eq_u32 s{S_TK}, s{S_DH2}", f"s_cselect_b32 s{S_KOFF}, 0, s{S_KOFF}"],
       [f"s_cmp_ge_u32 s{S_TK}, 17", f"s_cselect_b32 s{S_KOFF}, 0x100000, s{S_KOFF}"]]

def phase(mf, valu, cur_slot, cur_tag, nxt_slot, nxt_tag, dma_prev, dma_new, extra=(), opts={}):
    pre = {0: [f"WAITL {cur_tag}3"], 8: [f"WAITL {cur_tag}7"]}
    pre[16] = ["s_waitcnt vmcnt(16) lgkmcnt(0)", "s_barrier"]
    fixed = []
    rpos1 = [0, 1, 3, 4, 6, 7, 9, 10]
    rpos2 = [16, 18, 20, 22, 24, 26, 28, 30]
    for i in range(8):
        fixed.append((rpos1[i], [lds_read(cur_slot, 8 + i, cur_tag)]))
        fixed.append((rpos2[i], [lds_read(nxt_slot, i, nxt_tag)]))
    dpos1 = [1, 2, 5, 8, 11, 12, 13, 14, 15]
    dpos2 = [16, 17, 21, 25, 29]
    dp = list(dma_prev) + list(extra)
    assert len(dp) <= len(dpos1) and len(dma_new) <= len(dpos2)
    for p, it in zip(dpos1, dp): fixed.append((p, it))
    for p, it in zip(dpos2, dma_new): fixed.append((p, it))
    out, load = schedule(mf, fixed, [(list(valu), 0, 32)], dma_cost=opts.get("dma_cost", 2.5), pre=pre)
    return out

CHK = [f"v_max_f32 {v(VCHK)}, {v(LT)}, {v(LT+1)}", f"v_cmp_lt_f32 vcc, {s(S_THR)}, {v(VCHK)}"]
LACC = [f"v_add_f32 {v(LTOT)}, {v(LTOT)}, {v(LT)}", f"v_add_f32 {v(LTOT+1)}, {v(LTOT+1)}, {v(LT+1)}"]

def step(par, opts):
    pn = par ^ 1
    dK = dma_items(2 * pn, SK, S_KOFF)
    dV = dma_items(2 * par + 1, SV, S_VOFF)
    dVprev = dma_items(2 * pn + 1, SV, S_VOFF)
    A = phase(qk_mfmas(pn), softmax_items(par, 1, False) + CHK, 2 * pn, f"K{pn}_", 2 * par + 1, f"V{par}_",
              dVprev[5:], dK[:5], extra=ADV, opts=opts)
    A += [f"s_cbranch_vccnz K2_rare{par}", f"K2_rets{par}:"]
    B = phase(pv_mfmas(par), LACC + softmax_items(pn, 0, True), 2 * par + 1, f"V{par}_", 2 * par, f"K{par}_",
              dK[5:], dV[:5], opts=opts)
    return A + B

def rowmax(par, dst):
    L = []
    for rb in (0, 1):
        regs = [S(par, rb, kh) + r for kh in (0, 1) for r in range(16)]
        L.append(f"v_max3_f32 {v(dst+rb)}, {v(regs[0])}, {v(regs[1])}, {v(regs[2])}")
    for k in range(3, 31, 2):
        for rb in (0, 1):
            regs = [S(par, rb, kh) + r for kh in (0, 1) for r in range(16)]
            L.append(f"v_max3_f32 {v(dst+rb)}, {v(dst+rb)}, {v(regs[k])}, {v(regs[k+1])}")
    for rb in (0, 1):
        L.append(f"v_max_f32 {v(dst+rb)}, {v(dst+rb)}, {v(S(par, rb, 1) + 15)}")
    L += xhalf("v_max_f32", [dst, dst + 1], [dst + 2, dst + 3])
    return L

def xhalf(op, regs, tmps):
    L = [f"v_mov_b32 {v(t)}, {v(r)}" for r, t in zip(regs, tmps)]
    L.append("s_nop 1")
    L += [f"v_permlane32_swap_b32 {v(r)}, {v(t)}" for r, t in zip(regs, tmps)]
    L.append("s_nop 1")
    L += [f"{op} {v(r)}, {v(r)}, {v(t)}" for r, t in zip(regs, tmps)]
    return L

def rare(par):
    L = [f"K2_rare{par}:", "s_nop 15"]
    L += rowmax(par, T)
    for rb in (0, 1): L.append(f"v_max_f32 {v(T+rb)}, 0, {v(T+rb)}")
    for rb in (0, 1): L.append(f"v_exp_f32 {v(T+2+rb)}, -{v(T+rb)}")
    for p in (0, 1):
        for rb in (0, 1):
            for kh in (0, 1):
                for r in range(16):
                    x = S(p, rb, kh) + r
                    L.append(f"v_sub_f32 {v(x)}, {v(x)}, {v(T+rb)}")
    for rb in (0, 1):
        for r in range(16):
            L.append(f"v_sub_f32 {v(NEGM[rb]+r)}, {v(NEGM[rb]+r)}, {v(T+rb)}")
        L.append(f"v_mul_f32 {v(LTOT+rb)}, {v(LTOT+rb)}, {v(T+2+rb)}")
        for r0 in range(0, 64, 8):
            for r in range(8): L.append(f"v_accvgpr_read_b32 {v(T+8+r)}, {a(rb*64 + r0 + r)}")
            for r in range(8): L.append(f"v_mul_f32 {v(T+8+r)}, {v(T+8+r)}, {v(T+2+rb)}")
            for r in range(8): L.append(f"v_accvgpr_write_b32 {a(rb*64 + r0 + r)}, {v(T+8+r)}")
    L += softmax_items(par, 0, True) + softmax_items(par, 1, False)
    L += ["s_nop 1", f"s_cmp_eq_u32 s{S_N}, 0", f"s_cbranch_scc1 K2_retf{par}", f"s_branch K2_rets{par}"]
    return L

def flat(items): return [x for it in items for x in it]

def gen_k2(opts={}):
    L = []
    E = L.append
    E("s_cmp_ge_u32 s2, 256")
    E("s_cbranch_scc1 K2_done")
    E(f"s_load_dwordx2 s[56:57], s[0:1], {KA_WQ}")
    E(f"s_load_dwordx2 s[58:59], s[0:1], {KA_WS}")
    lane = T + 20
    E(f"v_and_b32 v{lane}, 63, v0")
    E(f"v_lshrrev_b32 v{T}, 6, v0")
    E("s_and_b32 s3, s2, 7")
    E(f"v_readfirstlane_b32 s{S_W}, v{T}")
    E("s_lshl_b32 s3, s3, 2")
    E("s_lshr_b32 s4, s2, 3")
    E("s_and_b32 s4, s4, 3")
    E(f"s_add_u32 s{S_HEAD}, s3, s4")
    E(f"s_lshr_b32 s{S_I}, s2, 5")
    E(f"v_lshlrev_b32 v{V_L16}, 4, v{lane}")
    VDW = T + 8
    E(f"v_lshrrev_b32 v{T+1}, 4, v{lane}")
    E(f"v_and_b32 v{T+2}, 15, v{lane}")
    E(f"v_lshlrev_b32 v{T+3}, 2, v{T+1}")
    E(f"v_xor_b32 v{T+2}, v{T+2}, v{T+3}")
    E(f"v_lshlrev_b32 v{T+2}, 4, v{T+2}")
    E(f"v_lshl_add_u32 v{T+3}, v{T+1}, 13, v{T+2}")
    E(f"s_lshl_b32 s3, s{S_W}, 17")
    E(f"v_add_u32 v{VDW}, s3, v{T+3}")
    for q in range(1, 4):
        E(f"v_add_u32 v{VDW+q}, {q * (4 * 8192 - 1024)}, v{VDW}")
    VWB = T + 12
    E(f"v_lshrrev_b32 v{T+2}, 5, v{lane}")
    E(f"v_bfe_u32 v{T}, v{lane}, 2, 2")
    E(f"v_lshl_add_u32 v{T+3}, v{T+2}, 3, v{T}")
    E(f"v_lshlrev_b32 v{T+3}, 8, v{T+3}")
    E(f"v_bfe_u32 v{T+4}, v{lane}, 4, 1")
    E(f"v_lshl_add_u32 v{T+3}, v{T+4}, 5, v{T+3}")
    E(f"v_and_b32 v{T+4}, 3, v{lane}")
    E(f"v_lshl_add_u32 v{T+3}, v{T+4}, 3, v{T+3}")
    E(f"v_lshl_add_u32 v{VWB}, v{T}, 6, v{T+3}")
    for b in range(1, 4):
        E(f"v_xor_b32 v{VWB+b}, {b * 64}, v{VWB}")
    for b in range(4):
        E(f"v_add_u32 v{VWB+4+b}, 0x10000, v{VWB+b}")
    E(f"v_and_b32 v{T}, 31, v{lane}")
    E(f"v_lshlrev_b32 v{T+2}, 2, v{T+2}")
    E(f"v_sub_u32 v{T}, v{T}, v{T+2}")
    E(f"s_and_b32 s3, s{S_W}, 1")
    E(f"s_lshr_b32 s4, s{S_W}, 1")
    E(f"s_sub_i32 s3, s3, s4")
    E(f"s_lshl_b32 s3, s3, 6")
    E(f"v_add_u32 v{V_THR+1}, s3, v{T}")
    E(f"v_add_u32 v{V_THR}, 32, v{V_THR+1}")
    E(f"v_subrev_u32 v{V_THR+2}, 32, v{V_THR+1}")
    E(f"v_mov_b32 v{V_BIG}, {hex(f2u(-1e30))}")
    E(f"s_lshl_b32 s5, s{S_W}, 13")
    E(f"v_add_u32 v{V_DMA[0]}, s5, v{V_L16}")
    E(f"v_add_u32 v{V_DMA[1]}, 4096, v{V_DMA[0]}")
    E(f"s_lshl_b32 s4, s4, 14")
    E(f"v_add_u32 v{V_LDS[0]}, s4, v{V_L16}")
    E(f"v_add_u32 v{V_LDS[1]}, 0x10000, v{V_LDS[0]}")
    for i in range(8):
        E(f"s_add_u32 s{S_M0+i}, s5, {(i // 2) * SLOT + (i % 2) * 4096}")
    E(f"s_mov_b32 s{S_SL3}, {3 * SLOT}")
    E(f"s_mov_b32 s{S_THR}, {hex(f2u(2.0 ** opts.get('thr_log2', 14)))}")
    E("s_waitcnt lgkmcnt(0)")
    E(f"s_lshl_b32 s3, s{S_HEAD}, 8")
    L += srd(SW, 56, "s3", 0x400000 - 0x1f00)
    L += srd(SXN, 58, WS_XN, 0x200000)
    E(f"s_sub_u32 s{S_DH1}, 15, s{S_I}")
    E(f"s_cmp_lt_u32 s{S_W}, 2")
    E(f"s_cselect_b32 s3, s{S_DH1}, s{S_I}")
    E(f"s_lshl_b32 s3, s3, 17")
    E(f"s_and_b32 s4, s{S_W}, 1")
    E(f"s_lshl_b32 s4, s4, 16")
    E(f"s_add_u32 s6, s3, s4")
    E(f"s_add_u32 s7, s6, 0x8000")
    E(f"s_lshl_b32 s38, s{S_W}, 12")
    E(f"s_mov_b32 s39, 0")
    def qloads(g):
        it = [["s_mov_b32 m0, s38"]]
        for q in range(4):
            it.append([f"buffer_load_dwordx4 v{VDW+q}, {s(SW,4)}, s39 offen offset:{q*1024} lds"])
        it[-1] += ["s_add_u32 s38, s38, 16384", f"s_add_u32 s39, s39, {64*8192}"]
        for ks in range(4):
            for tb in range(2):
                it.append([f"buffer_load_dwordx4 {a(((g*4+ks)*2+tb)*4, 4)}, v{V_L16}, {s(SXN,4)}, s{6+tb} offen offset:{ks*1024}"])
        it[-1] += ["s_add_u32 s6, s6, 4096", "s_add_u32 s7, s7, 4096"]
        return it
    NPRE = 5
    for g in range(NPRE): L += fix_m0(flat(qloads(g)))
    E(f"s_lshl_b32 s3, s{S_HEAD}, 19")
    L += srd(SK, 58, "s3", 0x80000)
    E(f"s_add_u32 s3, s3, {hex(WS_V)}")
    L += srd(SV, 58, "s3", 0x80000)
    E(f"s_lshl_b32 s3, s2, 15")
    E(f"s_add_u32 s3, s3, {hex(WS_Q)}")
    L += srd(SQ, 58, "s3", 0x8000)
    L += srd(SC, 58, WS_CTX, 0x1000000)
    E(f"s_lshl_b32 s{S_DLOFF}, s{S_I}, 15")
    E(f"s_lshl_b32 s{S_KOFF}, s{S_DH1}, 15")
    E(f"s_mov_b32 s{S_VOFF}, s{S_KOFF}")
    E(f"s_mov_b32 s{S_N}, s{S_DH1}")
    E(f"s_and_b32 s3, s{S_W}, 1")
    E(f"s_lshl_b32 s3, s3, 1")
    E(f"s_lshr_b32 s4, s{S_W}, 1")
    E(f"s_add_u32 s3, s3, s4")
    E(f"s_lshl_b32 s3, s3, 18")
    E(f"s_lshl_b32 s4, s{S_HEAD}, 13")
    E(f"s_add_u32 s{S_COFF}, s3, s4")
    E(f"s_mov_b32 s{S_BLK}, s{S_DH1}")
    E(f"s_add_u32 s{S_DH2}, s{S_DH1}, 2")
    E(f"s_add_u32 s{S_DH1}, s{S_DH1}, 1")
    WF = lambda buf, b: 128 + buf * 16 + b * 4
    def wreads(k, buf):
        r = []
        for b in range(4):
            for jj in range(2):
                row = 16 * k + 4 * jj
                base = VWB + b + (4 if row >= 256 else 0)
                r.append(f"ds_read_b64_tr_b16 {v(WF(buf,b) + 2*jj, 2)}, v{base} offset:{(row % 256) * 256} ; RD:w{k}_{b*2+jj}")
        return r
    Qp = []
    vm_issued = NPRE * 12
    vm_need = lambda g: (g + 1) * 12
    order = []
    for g in range(NPRE): order += [f"g{g}"] * 12
    def vmwait(tag):
        idx = max(i for i, t in enumerate(order) if t == tag)
        return min(63, len(order) - 1 - idx)
    Qp += [f"s_waitcnt vmcnt({vmwait('g0')})", "s_barrier"] + wreads(0, 0)
    for k in range(32):
        g = k // 4; buf = k & 1
        mf = []
        for b in range(4):
            for tb in range(2):
                d = v((b * 2 + tb) * 16, 16)
                mf.append(f"{MF} {d}, {v(WF(buf,b),4)}, {a((k*2+tb)*4,4)}, {d if k else 0}")
        pre = {0: [f"WAITL w{k}_3"], 4: [f"WAITL w{k}_7"]}
        fixed = []
        if k < 31:
            if k % 4 == 3:
                pre[0] = [f"s_waitcnt vmcnt({vmwait(f'g{g+1}')}) lgkmcnt(0)", "s_barrier"]
                pre.pop(4)
            rd = wreads(k + 1, buf ^ 1)
            fixed += [(i, [rd[i]]) for i in range(8)]
        extra = []
        if k % 4 in (0, 1) and g + NPRE < 8:
            f0, it = fold_m0(qloads(g + NPRE))
            if k % 4 == 0:
                pre[0] = f0 + pre[0]; extra = it[:6]
            else: extra = it[6:]
            order += [f"g{g+NPRE}"] * 6
        kv = {12: (0, SK, S_KOFF, "K0"), 20: (1, SV, S_VOFF, "V0"), 28: (2, SK, S_KOFF, "K1")}
        if k in kv:
            sl, sr, so, tag = kv[k]
            f0, it = fold_m0(dma_items(sl, sr, so))
            if k == 28: f0 = [f"s_mov_b32 s{S_KOFF}, 0", f"s_mov_b32 s{S_TK}, 1"] + f0
            pre[0] = f0 + pre[0]; extra = it
            order += [tag] * 8
        fixed += [(i, e) for i, e in enumerate(extra)]
        out, _ = schedule(mf, fixed, [], pre=pre)
        Qp += out
    Qp = fix_m0(resolve_lgkm(Qp))
    c = math.log2(math.e) / math.sqrt(128.0)
    Qp += [f"s_mov_b32 s3, {hex(f2u(c))}", "s_nop 7", "s_nop 3"]
    for t in range(8):
        for r in range(16): Qp.append(f"v_mul_f32 {v(t*16+r)}, s3, {v(t*16+r)}")
        for half in range(2):
            for q in range(4):
                Qp.append(f"v_cvt_pk_bf16_f32 {v(t*16+half*8+q)}, {v(t*16+half*8+2*q)}, {v(t*16+half*8+2*q+1)}")
    Qp += [f"s_and_b32 s3, s{S_W}, 1", "s_lshl_b32 s3, s3, 14", f"s_add_u32 s4, s3, {SPARE}",
           f"v_add_u32 v{V_XW}, s4, v{V_L16}", f"v_add_u32 v{V_XR}, s3, v{V_L16}",
           f"s_cmp_lt_u32 s{S_W}, 2", "s_cbranch_scc0 K2_qstash"]
    def qsrc(tb, ds): return ((ds // 2) * 2 + tb) * 16 + (ds % 2) * 8
    for tb in range(2):
        for ds in range(8):
            Qp.append(f"ds_write_b128 v{V_XW}, {v(qsrc(tb,ds),4)} offset:{(tb*8+ds)*1024}")
    Qp += ["s_branch K2_qx", "K2_qstash:"]
    for i in range(16):
        if i % 4 == 0: Qp.append(f"s_mov_b32 s3, {(i//4)*4096}")
        Qp.append(f"buffer_store_dwordx4 {v(qsrc(i//8,i%8),4)}, v{V_XR}, {s(SQ,4)}, s3 offen offset:{(i%4)*1024}")
    Qp += ["K2_qx:", "s_waitcnt vmcnt(16) lgkmcnt(0)", "s_barrier"]
    for i in range(16):
        Qp.append(f"ds_read_b128 {a(A_Q + i*4, 4)}, v{V_XW} offset:{i*1024}")
    L += Qp
    Pr = ["K2_pro:"]
    G = Pr.append
    for i in range(16): G(lds_read(0, i, "P"))
    for r in range(4): G(f"v_mov_b32 {v(P23 + r)}, 0")
    G(f"v_mov_b32 {v(LTOT)}, 0"); G(f"v_mov_b32 {v(LTOT+1)}, 0")
    zm = [f"{MF} {a(t*16,16)}, {v(P23,4)}, {v(P23,4)}, 0" for t in range(8)]
    mk = []
    for d, tiles in ((0, [(0, 0), (1, 1)]), (-1, [(1, 0)]), (1, [(0, 1)])):
        for r in range(16):
            mk.append(f"v_cmp_gt_i32 {s(S_MSK + 2*r, 2)}, {(r & 3) + 8 * (r >> 2)}, {v(V_THR + 1 + d)}")
        for (rb, kh) in tiles:
            for r in range(16):
                mk.append(f"v_cndmask_b32 {v(S(0, rb, kh) + r)}, 0, {v(V_BIG)}, {s(S_MSK + 2*r, 2)}")
    out, _ = schedule(zm, [], [(mk, 0, 8)])
    Pr += out
    G("s_waitcnt lgkmcnt(0)")
    Pr += qk_mfmas(0, cinit="self")
    G(f"s_xor_b32 s3, s{S_W}, 2"); G("s_lshl_b32 s3, s3, 13"); G(f"s_add_u32 s3, s3, s{S_SL3}")
    G(f"v_lshrrev_b32 v{T+6}, 1, v{V_L16}")
    G(f"v_add_u32 v{T+7}, s3, v{T+6}")
    G(f"s_xor_b32 s3, s3, 0x4000")
    G(f"v_add_u32 v{T+6}, s3, v{T+6}")
    G("s_nop 7")
    Pr += rowmax(0, T)
    G(f"ds_write_b64 v{T+7}, {v(T,2)}")
    G("s_waitcnt vmcnt(0) lgkmcnt(0)")
    G("s_barrier")
    G(f"ds_read_b64 {v(T+2,2)}, v{T+6}")
    Pr += flat(ADV)
    Pr += flat(dma_items(0, SK, S_KOFF))
    G("s_waitcnt lgkmcnt(0)")
    for rb in (0, 1): G(f"v_max_f32 {v(T+rb)}, {v(T+rb)}, {v(T+2+rb)}")
    Pr += flat(dma_items(3, SV, S_VOFF)[:5])
    for i in range(8): G(lds_read(2, i, "K1_"))
    for kh in (0, 1):
        for rb in (0, 1):
            for r in range(16):
                x = S(0, rb, kh) + r
                G(f"v_sub_f32 {v(x)}, {v(x)}, {v(T+rb)}")
    for rb in (0, 1):
        for r in range(16): G(f"v_sub_f32 {v(NEGM[rb]+r)}, 0, {v(T+rb)}")
    Pr += softmax_items(0, 0, True)
    G(f"s_cmp_eq_u32 s{S_N}, 0")
    G("s_cbranch_scc1 K2_fin0")
    Pr = fix_m0(Pr)
    L += Pr
    s0 = step(0, opts); s1 = step(1, opts)
    s0r = fix_m0(resolve_lgkm(s0, s1)); s1r = fix_m0(resolve_lgkm(s1, s0))
    dec = [f"s_sub_u32 s{S_N}, s{S_N}, 1", f"s_cmp_eq_u32 s{S_N}, 0"]
    loop = [".p2align 6", "K2_loop:"] + s0r + dec + ["s_cbranch_scc1 K2_fin1"] + s1r + dec + ["s_cbranch_scc0 K2_loop"]
    L += loop
    def fin(par):
        Fn = [f"K2_fin{par}:"]
        G = Fn.append
        Fn += flat(dma_items(2 * (par ^ 1) + 1, SV, S_VOFF)[5:])
        Fn += softmax_items(par, 1, False) + CHK
        G(f"s_cbranch_vccnz K2_rare{par}"); G(f"K2_retf{par}:")
        Fn += LACC
        Fn += xhalf("v_add_f32", [LTOT, LTOT + 1], [T, T + 1])
        G(f"s_cmp_lt_u32 s{S_W}, 2")
        G(f"s_cselect_b64 vcc, -1, 0")
        G(f"v_cndmask_b32 {v(T+2)}, {v(NEGM[0])}, {v(NEGM[1])}, vcc")
        G(f"v_cndmask_b32 {v(T+3)}, {v(LTOT)}, {v(LTOT+1)}, vcc")
        G(f"v_cndmask_b32 {v(T+4)}, {v(NEGM[1])}, {v(NEGM[0])}, vcc")
        G(f"v_cndmask_b32 {v(T+5)}, {v(LTOT+1)}, {v(LTOT)}, vcc")
        G(f"s_lshl_b32 s3, s{S_W}, 9"); G(f"s_add_u32 s3, s3, {SPARE}")
        G(f"v_lshrrev_b32 v{T+6}, 1, v{V_L16}")
        G(f"v_add_u32 v{T+7}, s3, v{T+6}")
        G(f"s_xor_b32 s3, s3, 0x400")
        G(f"v_add_u32 v{T+6}, s3, v{T+6}")
        G(f"ds_write_b64 v{T+7}, {v(T+2,2)}")
        G("s_waitcnt vmcnt(16) lgkmcnt(0)")
        G("s_barrier")
        vs = 2 * par + 1
        for i in range(8): G(lds_read(vs, i, "FV"))
        G(f"ds_read_b64 {v(T+2,2)}, v{T+6}")
        G(f"s_lshl_b32 s3, s{S_W}, 13")
        G(f"s_sub_u32 s{S_SL3}, s{S_M0 + vs*2}, s3")
        pre = {0: ["WAITL FV3"], 8: ["WAITL FV7"], 16: ["s_waitcnt lgkmcnt(0)", "s_barrier"]}
        fixed = [(i, [lds_read(vs, 8 + i, "FV")]) for i in range(8)]
        ql = []
        for i in range(16):
            it = [f"buffer_load_dwordx4 {a(A_Q + i*4, 4)}, v{V_XR}, {s(SQ,4)}, s4 offen offset:{(i%4)*1024}"]
            if i % 4 == 0: it = [f"s_mov_b32 s4, {(i//4)*4096}"] + it
            ql.append(it)
        fixed += [(i, ql[i]) for i in range(16)]
        fac = [f"v_min_f32 {v(T+8)}, {v(T+2)}, {v(T+4)}",
               f"v_sub_f32 {v(T+9)}, {v(T+8)}, {v(T+4)}",
               f"v_sub_f32 {v(T+10)}, {v(T+8)}, {v(T+2)}",
               f"v_exp_f32 {v(T+9)}, {v(T+9)}", f"v_exp_f32 {v(T+10)}, {v(T+10)}", "s_nop 0",
               f"v_mul_f32 {v(T+11)}, {v(T+9)}, {v(T+5)}",
               f"v_fmac_f32 {v(T+11)}, {v(T+10)}, {v(T+3)}",
               f"v_rcp_f32 {v(T+11)}, {v(T+11)}", "s_nop 0",
               f"v_mul_f32 {v(T+12)}, {v(T+9)}, {v(T+11)}",
               f"v_mul_f32 {v(T+14)}, {v(T+10)}, {v(T+11)}"]
        out, _ = schedule(pv_mfmas(par), fixed, [(fac, 16, 30)], pre=pre)
        Fn += out
        return fix_m0(resolve_lgkm(Fn))
    f0 = fin(0); f1 = fin(1)
    L += f0 + ["s_branch K2_epi"] + f1
    Ep = ["K2_epi:"]
    G = Ep.append
    G(f"s_and_b32 s3, s{S_W}, 1"); G("s_lshl_b32 s3, s3, 14")
    G(f"s_add_u32 s4, s3, {SPARE}"); G(f"s_add_u32 s5, s3, s{S_SL3}")
    G(f"s_cmp_lt_u32 s{S_W}, 2")
    G("s_cselect_b32 s6, s4, s5"); G("s_cselect_b32 s7, s5, s4")
    G(f"v_add_u32 v{T+6}, s6, v{V_L16}"); G(f"v_add_u32 v{T+7}, s7, v{V_L16}")
    G("s_nop 7")
    G("s_cbranch_scc0 K2_ep1")
    for c_, lab in ((0, None), (1, "K2_ep1:")):
        if lab: G(lab)
        for i in range(16): G(f"ds_write_b128 v{T+6}, {a((1-c_)*64 + i*4, 4)} offset:{i*1024}")
        for r in range(64): G(f"v_accvgpr_read_b32 {v(r)}, {a(c_*64 + r)}")
        if c_ == 0: G("s_branch K2_ep2")
    G("K2_ep2:")
    G("s_waitcnt lgkmcnt(0)")
    G("s_barrier")
    for i in range(16): G(f"ds_read_b128 {v(64 + i*4, 4)}, v{T+7} offset:{i*1024} ; RD:X{i}")
    for r in range(0, 64, 2):
        G(f"v_pk_mul_f32 {v(r,2)}, {v(r,2)}, {v(T+12,2)} op_sel_hi:[1,0]")
    G(f"s_lshl_b32 s3, s{S_BLK}, 20"); G(f"s_add_u32 s3, s3, s{S_COFF}"); G("s_add_u32 s4, s3, 4096")
    fl = opts.get("ctx_store_flags", "sc0 sc1")
    for f in range(8):
        G(f"WAITL X{2*f+1}")
        for r in range(f * 8, f * 8 + 8, 2):
            G(f"v_pk_fma_f32 {v(r,2)}, {v(64+r,2)}, {v(T+14,2)}, {v(r,2)} op_sel_hi:[1,0,1]")
        for q in range(4):
            G(f"v_cvt_pk_bf16_f32 {v(f*8+q)}, {v(f*8+2*q)}, {v(f*8+2*q+1)}")
        G(f"buffer_store_dwordx4 {v(f*8,4)}, v{V_L16}, {s(SC,4)}, s{3 + f//4} offen offset:{(f%4)*1024} {fl}")
    G(f"s_cmp_eq_u32 s{S_BLK}, s{S_I}")
    G("s_cbranch_scc1 K2_done")
    G(f"s_mov_b32 s{S_BLK}, s{S_I}")
    G(f"s_mov_b32 s{S_N}, s{S_I}")
    G(f"s_and_b32 s3, s{S_I}, 1"); G("s_lshl_b32 s3, s3, 16")
    for i in range(8): G(f"s_xor_b32 s{S_M0+i}, s{S_M0+i}, s3")
    G(f"v_xor_b32 v{V_LDS[0]}, s3, v{V_LDS[0]}"); G(f"v_xor_b32 v{V_LDS[1]}, s3, v{V_LDS[1]}")
    G("s_waitcnt vmcnt(8)")
    G("s_barrier")
    G("s_branch K2_pro")
    Ep = resolve_lgkm(Ep)
    L += Ep
    r0 = rare(0); r1 = rare(1)
    L += r0 + r1
    E("K2_done:")
    for nm, seq in (("pro", Qp + Pr + s0r + s1r + s0r), ("f1", s0r + f1 + Ep + Pr), ("f0", s1r + f0 + Ep), ("pf0", Pr + f0),
                    ("r0", s0r[:s0r.index("K2_rets0:")] + r0 + s0r[s0r.index("K2_rets0:"):]), ("r1", r1 + f1[f1.index("K2_retf1:"):]), ("head", L[:200])):
        for e in check_hazards(seq, "k2" + nm): print(e)
    return L
```

```python
from common import *

def flat(items): return [x for it in items for x in it]

def gen_skinny(kind, opts={}):
    P = f"K{kind}"
    NKS = 256 if kind == 3 else 112
    KW = NKS // 4
    NU = KW // 2
    RING = 8; DEPTH = 7
    L = []
    E = L.append
    ACC = 0
    WFR = lambda buf, ks, nb: 64 + buf * 16 + (ks * 2 + nb) * 4
    BF = lambda slot, ks, tb: (slot * 4 + ks * 2 + tb) * 4
    VD = 100; VT = 104; VL = 106; RES = 108; T = 120
    SW, SB, SR, SO, SST, SCI, SCO = 8, 12, 16, 20, 24, 28, 32
    S_W, S_RT, S_CT, S_WO, S_B0, S_B1, S_LB = 40, 41, 42, 43, 44, 45, 46
    E("s_cmp_ge_u32 s2, 256")
    E(f"s_cbranch_scc1 {P}_done")
    E(f"s_load_dwordx2 s[52:53], s[0:1], {KA_WO if kind == 3 else KA_WD}")
    E(f"s_load_dwordx2 s[54:55], s[0:1], {KA_WS}")
    E(f"s_load_dwordx2 s[56:57], s[0:1], {KA_X if kind == 3 else KA_OUT}")
    if kind == 3: E(f"s_load_dwordx4 s[60:63], s[0:1], {KA_WG}")
    lane = T + 20
    E(f"v_and_b32 v{lane}, 63, v0")
    E(f"v_lshrrev_b32 v{T}, 6, v0")
    E("s_and_b32 s3, s2, 1")
    E(f"v_readfirstlane_b32 s{S_W}, v{T}")
    E("s_lshl_b32 s3, s3, 2")
    E("s_bfe_u32 s4, s2, 0x20003")
    E(f"s_add_u32 s{S_CT}, s3, s4")
    E("s_bfe_u32 s3, s2, 0x20001")
    E("s_lshl_b32 s3, s3, 3")
    E("s_lshr_b32 s4, s2, 5")
    E(f"s_add_u32 s{S_RT}, s3, s4")
    E(f"v_lshlrev_b32 v{VL}, 4, v{lane}")
    E(f"v_lshrrev_b32 v{T}, 3, v{lane}")
    E(f"v_bfe_u32 v{T+1}, v{lane}, 4, 1")
    E(f"v_lshlrev_b32 v{T+2}, 2, v{T+1}")
    E(f"v_and_b32 v{T+3}, 7, v{lane}")
    E(f"v_xor_b32 v{T+2}, v{T+2}, v{T+3}")
    E(f"v_lshlrev_b32 v{T+2}, 4, v{T+2}")
    E(f"v_lshl_add_u32 v{VD}, v{T}, 10, v{T+2}")
    for q in range(1, 4): E(f"v_add_u32 v{VD+q}, {q * (8192 - 1024)}, v{VD}")
    E(f"v_lshrrev_b32 v{T+4}, 5, v{lane}")
    E(f"v_bfe_u32 v{T+5}, v{lane}, 2, 2")
    E(f"v_lshl_add_u32 v{T+6}, v{T+4}, 2, v{T+5}")
    E(f"v_lshlrev_b32 v{T+6}, 7, v{T+6}")
    E(f"v_lshl_add_u32 v{T+6}, v{T+1}, 5, v{T+6}")
    E(f"v_and_b32 v{T+7}, 3, v{lane}")
    E(f"v_lshl_add_u32 v{T+6}, v{T+7}, 3, v{T+6}")
    E(f"v_bfe_u32 v{T+7}, v{lane}, 3, 1")
    E(f"v_lshl_add_u32 v{T+6}, v{T+7}, 6, v{T+6}")
    E(f"s_lshl_b32 s{S_LB}, s{S_W}, 15")
    E(f"v_add_u32 v{VT}, s{S_LB}, v{T+6}")
    E(f"v_xor_b32 v{VT+1}, 64, v{VT}")
    E("s_waitcnt lgkmcnt(0)")
    L += srd(SW, 52, 0, NKS * 16 * 1024)
    L += srd(SB, 54, WS_CTX if kind == 3 else WS_HH, 64 * NKS * 1024)
    E(f"s_mul_i32 s{S_WO}, s{S_W}, {KW * 16 * 1024}")
    E(f"s_lshl_b32 s3, s{S_CT}, 7")
    E(f"s_add_u32 s{S_WO}, s{S_WO}, s3")
    E(f"s_mul_i32 s{S_B0}, s{S_RT}, {2 * NKS * 1024}")
    E(f"s_mul_i32 s3, s{S_W}, {KW * 1024}")
    E(f"s_add_u32 s{S_B0}, s{S_B0}, s3")
    E(f"s_add_u32 s{S_B1}, s{S_B0}, {NKS * 1024}")
    if kind == 3:
        E("s_cmp_ge_u32 s2, 224")
        E(f"s_cbranch_scc1 {P}_nocs1")
        E("s_mul_i32 s3, s2, 1171")
        E("s_lshr_b32 s3, s3, 16")
        E("s_mul_i32 s4, s3, 56")
        E("s_sub_u32 s4, s2, s4")
        E("s_cmp_ge_u32 s4, 28")
        E(f"s_cselect_b32 s{SCI}, s62, s60")
        E(f"s_cselect_b32 s{SCI+1}, s63, s61")
        E(f"s_mov_b32 s{SCI+2}, {512 * 3584}")
        E(f"s_mov_b32 s{SCI+3}, 0x00020000")
        E("s_cselect_b32 s5, 28, 0")
        E("s_sub_u32 s5, s4, s5")
        E("s_lshl_b32 s5, s5, 7")
        E("s_lshl_b32 s3, s3, 2")
        E(f"s_add_u32 s3, s3, s{S_W}")
        E(f"s_mul_i32 s6, s3, {32 * 3584}")
        E("s_add_u32 s5, s5, s6")
        E(f"s_mul_i32 s47, s3, {3584 * 4}")
        E("s_lshl_b32 s4, s4, 8")
        E("s_add_u32 s47, s47, s4")
        E(f"v_mul_u32_u24 v{T+8}, 3584, v{T}")
        E(f"v_lshl_add_u32 v{T+8}, v{T+3}, 4, v{T+8}")
        for i in range(4):
            E(f"buffer_load_dwordx4 {v(160 + i*4, 4)}, v{T+8}, {s(SCI,4)}, s5 offen")
            if i < 3: E(f"s_add_u32 s5, s5, {8 * 3584}")
        E(f"{P}_nocs1:")
    def loads(u):
        slot = u % RING
        it = [[f"s_add_u32 m0, s{S_LB}, {slot * 4096}"]]
        for q in range(4):
            it.append([f"buffer_load_dwordx4 v{VD+q}, {s(SW,4)}, s{S_WO} offen offset:{q*1024} lds"])
        it[-1].append(f"s_add_u32 s{S_WO}, s{S_WO}, 32768")
        for ks in range(2):
            for tb in range(2):
                off = ((u % 2) * 2 + ks) * 1024
                it.append([f"buffer_load_dwordx4 {a(BF(slot,ks,tb),4)}, v{VL}, {s(SB,4)}, s{S_B0+tb} offen offset:{off}"])
        if u % 2 == 1:
            it[-1] += [f"s_add_u32 s{S_B0}, s{S_B0}, 4096", f"s_add_u32 s{S_B1}, s{S_B1}, 4096"]
        return it
    for u in range(DEPTH): L += fix_m0(flat(loads(u)))
    if kind == 3:
        L += srd(SR, 56, 0, 0x200000)
        L += srd(SO, 54, WS_H, 0x200000)
        L += srd(SST, 54, WS_ST, 0x40000)
        L += srd(SCO, 54, WS_CS, 16 * 3584 * 4)
        E("s_cmp_ge_u32 s2, 224")
        E(f"s_cbranch_scc1 {P}_nocs2")
        E(f"s_waitcnt vmcnt({DEPTH * 8})")
        C = 180
        for j in range(4):
            E(f"v_lshlrev_b32 v{C+2*j}, 16, v{160+j}")
            E(f"v_and_b32 v{C+2*j+1}, 0xffff0000, v{160+j}")
        for i in range(1, 4):
            for j in range(4):
                E(f"v_lshlrev_b32 v{C+8}, 16, v{160+i*4+j}")
                E(f"v_and_b32 v{C+9}, 0xffff0000, v{160+i*4+j}")
                E(f"v_add_f32 v{C+2*j}, v{C+2*j}, v{C+8}")
                E(f"v_add_f32 v{C+2*j+1}, v{C+2*j+1}, v{C+9}")
        E("s_nop 1")
        for j in range(8): E(f"v_add_f32_dpp v{C+j}, v{C+j}, v{C+j} row_ror:8 row_mask:0xf bank_mask:0xf")
        for sw in ("v_permlane16_swap_b32", "v_permlane32_swap_b32"):
            for j in range(8): E(f"v_mov_b32 v{C+8+j}, v{C+j}")
            E("s_nop 1")
            for j in range(8): E(f"{sw} v{C+j}, v{C+8+j}")
            E("s_nop 1")
            for j in range(8): E(f"v_add_f32 v{C+j}, v{C+j}, v{C+8+j}")
        E(f"v_lshlrev_b32 v{C+8}, 1, v{VL}")
        E("s_mov_b64 exec, 0xff")
        E(f"buffer_store_dwordx4 {v(C,4)}, v{C+8}, {s(SCO,4)}, s47 offen")
        E(f"buffer_store_dwordx4 {v(C+4,4)}, v{C+8}, {s(SCO,4)}, s47 offen offset:16")
        E("s_mov_b64 exec, -1")
        E(f"{P}_nocs2:")
    else:
        L += srd(SR, 54, WS_H, 0x200000)
        L += srd(SO, 56, 0, 0x200000)
    VRM = T + 10
    E(f"v_and_b32 v{T}, 31, v{lane}")
    E(f"v_lshlrev_b32 v{T}, 10, v{T}")
    E(f"v_lshl_add_u32 v{VRM}, v{T+4}, 4, v{T}")
    E(f"s_and_b32 s3, s{S_W}, 1")
    E(f"s_lshl_b32 s4, s{S_RT}, 1")
    E(f"s_add_u32 s48, s3, s4")
    E(f"s_lshr_b32 s3, s{S_W}, 1")
    E(f"s_lshl_b32 s4, s{S_CT}, 1")
    E(f"s_add_u32 s49, s3, s4")
    E(f"s_lshl_b32 s50, s48, 15")
    E(f"s_lshl_b32 s3, s49, 6")
    E(f"s_add_u32 s51, s50, s3")
    E(f"s_lshl_b32 s3, s49, 11")
    E(f"s_add_u32 s50, s50, s3")
    if kind == 3:
        E(f"buffer_load_dwordx4 {v(RES,4)}, v{VRM}, {s(SR,4)}, s51 offen")
        E(f"buffer_load_dwordx4 {v(RES+4,4)}, v{VRM}, {s(SR,4)}, s51 offen offset:32")
    else:
        E(f"buffer_load_dwordx4 {v(RES,4)}, v{VL}, {s(SR,4)}, s50 offen")
        E(f"buffer_load_dwordx4 {v(RES+4,4)}, v{VL}, {s(SR,4)}, s50 offen offset:1024")
    def treads(u):
        slot = u % RING; buf = u & 1
        r = []
        for ks in range(2):
            for nb in range(2):
                for jj in range(2):
                    r.append(f"ds_read_b64_tr_b16 {v(WFR(buf,ks,nb) + 2*jj, 2)}, v{VT+nb} offset:{slot*4096 + (16*ks + 8*jj)*128} ; RD:u{u}_{(ks*2+nb)*2+jj}")
        return r
    M = [f"s_waitcnt vmcnt({(DEPTH - 1) * 8})"] + treads(0)
    for u in range(NU):
        slot = u % RING; buf = u & 1
        mf = []
        for ks in range(2):
            for nb in range(2):
                for tb in range(2):
                    d = v(ACC + (nb * 2 + tb) * 16, 16)
                    mf.append(f"{MF} {d}, {v(WFR(buf,ks,nb),4)}, {a(BF(slot,ks,tb),4)}, {d if (u or ks) else 0}")
        pre = {0: ["s_waitcnt lgkmcnt(0)"]}
        fixed = []
        if u + 1 < NU:
            outstanding = min(NU - 1, u + DEPTH - 1) - (u + 1)
            pre[0] = [f"s_waitcnt vmcnt({outstanding * 8}) lgkmcnt(0)"]
            rd = treads(u + 1)
            fixed += [(i // 2, [rd[i]]) for i in range(8)]
        if u + DEPTH < NU:
            f0, it = fold_m0(loads(u + DEPTH))
            pre[0] = f0 + pre[0]
            fixed += [(i, it[i]) for i in range(8)]
        out, _ = schedule(mf, fixed, [], pre=pre)
        M += out
    M = fix_m0(M)
    L += M
    Ep = []
    G = Ep.append
    G(f"v_add_u32 v{T}, s{S_LB}, v{VL}")
    G(f"s_lshl_b32 s3, s{S_W}, 12")
    G(f"v_add_u32 v{T+1}, s3, v{VL}")
    G(f"v_add_u32 v{T+2}, 0x10000, v{T+1}")
    G("s_nop 7"); G("s_nop 1")
    for i in range(16): G(f"ds_write_b128 v{T}, {v(ACC + i*4, 4)} offset:{i*1024}")
    G("s_waitcnt vmcnt(0) lgkmcnt(0)")
    G("s_barrier")
    for src in range(4):
        for i in range(4):
            G(f"ds_read_b128 {v(src*16 + i*4, 4)}, v{T + 1 + src//2} offset:{(src%2)*32768 + i*1024} ; RD:x{src}_{i}")
    if kind == 3:
        G(f"v_permlane32_swap_b32 v{RES}, v{RES+2}"); G(f"v_permlane32_swap_b32 v{RES+1}, v{RES+3}")
        G(f"v_permlane32_swap_b32 v{RES+4}, v{RES+6}"); G(f"v_permlane32_swap_b32 v{RES+5}, v{RES+7}")
        G("s_nop 1")
    X = 64
    for j in range(8):
        G(f"v_lshlrev_b32 v{X+2*j}, 16, v{RES+j}")
        G(f"v_and_b32 v{X+2*j+1}, 0xffff0000, v{RES+j}")
    G("WAITL x1_3")
    for r in range(0, 16, 2): G(f"v_pk_add_f32 {v(r,2)}, {v(r,2)}, {v(16+r,2)}")
    G("WAITL x3_3")
    for r in range(0, 16, 2): G(f"v_pk_add_f32 {v(32+r,2)}, {v(32+r,2)}, {v(48+r,2)}")
    for r in range(0, 16, 2): G(f"v_pk_add_f32 {v(r,2)}, {v(r,2)}, {v(32+r,2)}")
    for r in range(0, 16, 2): G(f"v_pk_add_f32 {v(r,2)}, {v(r,2)}, {v(X+r,2)}")
    for q in range(8): G(f"v_cvt_pk_bf16_f32 v{16+q}, v{2*q}, v{2*q+1}")
    if kind == 3:
        G(f"buffer_store_dwordx4 {v(16,4)}, v{VL}, {s(SO,4)}, s50 offen")
        G(f"buffer_store_dwordx4 {v(20,4)}, v{VL}, {s(SO,4)}, s50 offen offset:1024")
        for j in range(8):
            G(f"v_lshlrev_b32 v{X+2*j}, 16, v{16+j}")
            G(f"v_and_b32 v{X+2*j+1}, 0xffff0000, v{16+j}")
        G(f"v_add_f32 v32, v{X}, v{X+1}")
        G(f"v_mul_f32 v33, v{X}, v{X}")
        G(f"v_fmac_f32 v33, v{X+1}, v{X+1}")
        for j in range(2, 16):
            G(f"v_add_f32 v32, v32, v{X+j}")
            G(f"v_fmac_f32 v33, v{X+j}, v{X+j}")
        G("v_mov_b32 v34, v32"); G("v_mov_b32 v35, v33"); G("s_nop 1")
        G("v_permlane32_swap_b32 v32, v34"); G("v_permlane32_swap_b32 v33, v35"); G("s_nop 1")
        G("v_add_f32 v32, v32, v34"); G("v_add_f32 v33, v33, v35")
        G(f"v_lshlrev_b32 v36, 3, v{VL}")
        G("s_lshl_b32 s3, s48, 12")
        G("s_lshl_b32 s4, s49, 3")
        G("s_add_u32 s3, s3, s4")
        G("s_mov_b32 exec_hi, 0")
        G(f"buffer_store_dwordx2 v[32:33], v36, {s(SST,4)}, s3 offen")
    else:
        G("s_nop 1")
        G("v_permlane32_swap_b32 v16, v18"); G("v_permlane32_swap_b32 v17, v19")
        G("v_permlane32_swap_b32 v20, v22"); G("v_permlane32_swap_b32 v21, v23")
        G(f"buffer_store_dwordx4 {v(16,4)}, v{VRM}, {s(SO,4)}, s51 offen")
        G(f"buffer_store_dwordx4 {v(20,4)}, v{VRM}, {s(SO,4)}, s51 offen offset:32")
    L += resolve_lgkm(Ep)
    E(f"{P}_done:")
    for e in check_hazards(L, P): print(e)
    return L
```

```python
from common import *

def flat(items): return [x for it in items for x in it]

def gen_k4(opts={}):
    L = []
    E = L.append
    SUB = 14592; UPOFF = 7168 + 128; STG = 2 * SUB; RING = 5
    CSL = RING * STG
    ACC = 0
    WF = lambda buf, j: 112 + buf * 28 + j * 4
    HF = lambda ks: ks * 4
    VD = 168
    VT = 176
    VL = 179; VMEAN = 180; VR2 = 182
    T = 184
    SW, SH, SST, SCS, SO = 8, 12, 16, 20, 24
    S_W, S_RT, S_CT, S_WO, S_HO, S_LB = 40, 41, 42, 43, 44, 45
    E("s_cmp_ge_u32 s2, 256")
    E("s_cbranch_scc1 K4_done")
    E(f"s_load_dwordx4 s[52:55], s[0:1], {KA_WG}")
    E(f"s_load_dwordx2 s[56:57], s[0:1], {KA_WS}")
    lane = T + 40
    E(f"v_and_b32 v{lane}, 63, v0")
    E(f"v_lshrrev_b32 v{T}, 6, v0")
    E("s_and_b32 s3, s2, 3")
    E(f"v_readfirstlane_b32 s{S_W}, v{T}")
    E("s_lshl_b32 s3, s3, 2")
    E("s_bfe_u32 s4, s2, 0x20003")
    E(f"s_add_u32 s{S_CT}, s3, s4")
    E("s_bfe_u32 s3, s2, 0x10002")
    E("s_lshl_b32 s3, s3, 3")
    E("s_lshr_b32 s4, s2, 5")
    E(f"s_add_u32 s{S_RT}, s3, s4")
    E(f"v_lshlrev_b32 v{VL}, 4, v{lane}")
    for p in range(7):
        E(f"v_add_u32 v{T}, {64*p}, v{lane}")
        E(f"v_mul_u32_u24 v{T+1}, 4682, v{T}")
        E(f"v_lshrrev_b32 v{T+1}, 16, v{T+1}")
        E(f"v_mul_u32_u24 v{T+2}, {3584 - 14*16}, v{T+1}")
        E(f"v_lshl_add_u32 v{T+2}, v{T}, 4, v{T+2}")
        E(f"v_subrev_u32 v{VD+p}, {(p & 3) * 1024}, v{T+2}")
    E(f"v_lshrrev_b32 v{T+4}, 5, v{lane}")
    E(f"v_bfe_u32 v{T+5}, v{lane}, 2, 2")
    E(f"v_lshl_add_u32 v{T+6}, v{T+4}, 2, v{T+5}")
    E(f"v_mul_u32_u24 v{T+6}, 224, v{T+6}")
    E(f"v_bfe_u32 v{T+7}, v{lane}, 1, 1")
    E(f"v_mul_u32_u24 v{T+7}, {UPOFF}, v{T+7}")
    E(f"v_add_u32 v{T+6}, v{T+6}, v{T+7}")
    E(f"v_bfe_u32 v{T+7}, v{lane}, 4, 1")
    E(f"v_lshl_add_u32 v{T+6}, v{T+7}, 4, v{T+6}")
    E(f"v_and_b32 v{T+7}, 1, v{lane}")
    E(f"v_lshl_add_u32 v{VT}, v{T+7}, 3, v{T+6}")
    E(f"v_add_u32 v{VT+1}, {2*STG}, v{VT}")
    E(f"v_add_u32 v{VT+2}, {4*STG}, v{VT}")
    E("s_waitcnt lgkmcnt(0)")
    E(f"s_and_b32 s3, s{S_W}, 1")
    E("s_cmp_eq_u32 s3, 1")
    E(f"s_cselect_b32 s{SW}, s54, s52")
    E(f"s_cselect_b32 s{SW+1}, s55, s53")
    E(f"s_mov_b32 s{SW+2}, {512*3584}")
    E(f"s_mov_b32 s{SW+3}, 0x00020000")
    E(f"s_cselect_b32 s{S_LB}, {UPOFF}, 0")
    E(f"s_lshr_b32 s3, s{S_W}, 1")
    E(f"s_mul_i32 s4, s3, {SUB}")
    E(f"s_add_u32 s{S_LB}, s{S_LB}, s4")
    E(f"s_mul_i32 s{S_WO}, s3, {32*3584}")
    E(f"s_mul_i32 s4, s{S_CT}, 224")
    E(f"s_add_u32 s{S_WO}, s{S_WO}, s4")
    L += srd(SH, 56, WS_H, 0x200000)
    L += srd(SST, 56, WS_ST, 0x40000)
    L += srd(SCS, 56, WS_CS, 16 * 3584 * 4)
    E(f"s_lshl_b32 s3, s{S_RT}, 2")
    E(f"s_add_u32 s46, s3, s{S_W}")
    E(f"s_lshl_b32 s{S_HO}, s46, 15")
    def loads(g):
        slot = g % RING
        it = []
        for p in range(7):
            if p % 4 == 0: it.append([f"s_add_u32 m0, s{S_LB}, {slot*STG + p*1024}"])
            it.append([f"buffer_load_dwordx4 v{VD+p}, {s(SW,4)}, s{S_WO} offen offset:{(p&3)*1024} lds"])
        it[-1].append(f"s_add_u32 s{S_WO}, s{S_WO}, {64*3584}")
        for ks in range(4):
            it.append([f"buffer_load_dwordx4 {a(HF(g*4+ks),4)}, v{VL}, {s(SH,4)}, s{S_HO} offen offset:{ks*1024}"])
        it[-1].append(f"s_add_u32 s{S_HO}, s{S_HO}, 4096")
        return it
    order = []
    def vmwait(tag):
        idx = max(i for i, t in enumerate(order) if t == tag)
        return min(63, len(order) - 1 - idx)
    L += fix_m0(flat(loads(0))); order += ["g0"] * 11
    CS = 0
    E(f"v_cmp_gt_u32 vcc, 112, v0")
    E(f"v_add_u32 v{T}, {1792-112}, v0")
    E(f"s_mul_i32 s3, s{S_CT}, 448")
    E(f"v_cndmask_b32 v{T}, v{T}, v0, vcc")
    E(f"v_lshlrev_b32 v{T}, 2, v{T}")
    E(f"v_lshlrev_b32 v{T+8}, 2, v0")
    E(f"v_add_u32 v{T+8}, {CSL}, v{T+8}")
    for i in range(16):
        E(f"buffer_load_dword v{CS+i}, v{T}, {s(SCS,4)}, s3 offen")
        if i < 15: E(f"s_add_u32 s3, s3, {3584*4}")
    ST = 16
    E(f"v_and_b32 v{T+1}, 31, v{lane}")
    E(f"v_lshlrev_b32 v{T+1}, 7, v{T+1}")
    E(f"v_lshl_add_u32 v{T+1}, v{T+4}, 6, v{T+1}")
    E(f"s_lshl_b32 s3, s46, 12")
    for i in range(4):
        E(f"buffer_load_dwordx4 {v(ST+i*4,4)}, v{T+1}, {s(SST,4)}, s3 offen offset:{i*16}")
    order += ["aux"] * 20
    for g in (1, 2): L += fix_m0(flat(loads(g))); order += [f"g{g}"] * 11
    L += srd(SO, 56, WS_HH, 64 * 112 * 1024)
    E(f"s_waitcnt vmcnt({vmwait('aux')})")
    for g in (3, 4): L += fix_m0(flat(loads(g))); order += [f"g{g}"] * 11
    for st in (8, 4, 2, 1):
        for i in range(st): E(f"v_add_f32 v{CS+i}, v{CS+i}, v{CS+i+st}")
    E(f"ds_write_b32 v{T+8}, v{CS}")
    for st in (8, 4, 2):
        for i in range(st): E(f"v_add_f32 v{ST+i}, v{ST+i}, v{ST+i+st}")
    E(f"v_mov_b32 v{ST+2}, v{ST}"); E(f"v_mov_b32 v{ST+3}, v{ST+1}"); E("s_nop 1")
    E(f"v_permlane32_swap_b32 v{ST}, v{ST+2}"); E(f"v_permlane32_swap_b32 v{ST+1}, v{ST+3}"); E("s_nop 1")
    E(f"v_add_f32 v{ST}, v{ST}, v{ST+2}"); E(f"v_add_f32 v{ST+1}, v{ST+1}, v{ST+3}")
    E(f"v_mul_f32 v{ST}, 0x3b000000, v{ST}")
    E(f"v_mul_f32 v{ST+1}, 0x3b000000, v{ST+1}")
    E(f"v_fma_f32 v{ST+1}, -v{ST}, v{ST}, v{ST+1}")
    E(f"v_max_f32 v{ST+1}, 0, v{ST+1}")
    E(f"v_add_f32 v{ST+1}, 0x3727c5ac, v{ST+1}")
    E(f"v_rcp_f32 v{VR2}, v{ST+1}")
    E(f"v_sub_f32 v{VMEAN}, 0, v{ST}")
    def treads(k):
        g = k // 4; slot = g % RING; kk = k % 4
        r = []
        for j in range(7):
            for jj in range(2):
                off = (slot % 2) * STG + (kk // 2) * SUB + ((kk % 2) * 16 + 8 * jj) * 224 + j * 32
                r.append(f"ds_read_b64_tr_b16 {v(WF(k&1,j) + 2*jj, 2)}, v{VT + slot//2} offset:{off} ; RD:k{k}_{j*2+jj}")
        return r
    M = [f"s_waitcnt vmcnt({vmwait('g0')}) lgkmcnt(0)", "s_barrier"] + treads(0)
    for k in range(32):
        g = k // 4
        mf = [f"{MF} {v(ACC+j*16,16)}, {v(WF(k&1,j),4)}, {a(HF(k),4)}, {v(ACC+j*16,16) if k else 0}" for j in range(7)]
        pre = {0: [f"WAITL k{k}_5"], 3: [f"WAITL k{k}_13"]}
        fixed = []
        if k < 31:
            if k % 4 == 3:
                pre = {0: [f"s_waitcnt vmcnt({vmwait(f'g{g+1}')}) lgkmcnt(0)", "s_barrier"]}
            rd = treads(k + 1)
            pos = [0, 0, 0, 1, 1, 1, 2, 2, 2, 3, 3, 4, 4, 5] if k % 4 == 2 else [i // 2 for i in range(14)]
            fixed += [(pos[i], [rd[i]]) for i in range(14)]
        gp = g - 1
        if k % 4 in (0, 1) and gp >= 0 and gp + RING < 8:
            f0, it = fold_m0(loads(gp + RING))
            if k % 4 == 0:
                pre[0] = f0 + pre[0]; ex = it[:6]
            else: ex = it[6:]
            order += [f"g{gp+RING}"] * len(ex)
            fixed += [(i, e) for i, e in enumerate(ex)]
        out, _ = schedule(mf, fixed, [], pre=pre)
        M += out
    L += fix_m0(resolve_lgkm(M))
    Ep = []
    G = Ep.append
    G(f"v_lshlrev_b32 v{T}, 4, v{T+4}")
    G(f"v_add_u32 v{T}, {CSL}, v{T}")
    CB = 112
    def csr(j):
        b = CB + (j % 3) * 16
        return [f"ds_read_b128 {v(b,4)}, v{T} offset:{j*64} ; RD:c{j}_0",
                f"ds_read_b128 {v(b+4,4)}, v{T} offset:{448 + j*64} ; RD:c{j}_1",
                f"ds_read_b128 {v(b+8,4)}, v{T} offset:{j*64 + 32} ; RD:c{j}_2",
                f"ds_read_b128 {v(b+12,4)}, v{T} offset:{448 + j*64 + 32} ; RD:c{j}_3"]
    G("s_nop 3")
    Ep += csr(0) + csr(1)
    G(f"s_mul_i32 s3, s46, {112*1024}")
    G(f"s_mul_i32 s4, s{S_CT}, {7*1024}")
    G("s_add_u32 s3, s3, s4")
    G("s_add_u32 s4, s3, 4096")
    fl = opts.get("hh_store_flags", "sc0 sc1")
    for j in range(7):
        if j + 2 < 7: Ep += csr(j + 2)
        G(f"WAITL c{j}_3")
        b = CB + (j % 3) * 16; A_ = ACC + j * 16
        for r in range(0, 16, 2):
            G(f"v_pk_fma_f32 {v(A_+r,2)}, {v(b+r,2)}, {v(VMEAN,2)}, {v(A_+r,2)} op_sel_hi:[1,0,1]")
        for r in (0, 2, 8, 10):
            G(f"v_pk_mul_f32 {v(A_+r,2)}, {v(A_+r,2)}, {v(A_+r+4,2)}")
        for r in (0, 2, 8, 10):
            G(f"v_pk_mul_f32 {v(A_+r,2)}, {v(A_+r,2)}, {v(VR2,2)} op_sel_hi:[1,0]")
        for q, r in enumerate((0, 2, 8, 10)):
            G(f"v_cvt_pk_bf16_f32 v{A_+4+q}, v{A_+r}, v{A_+r+1}")
        G(f"buffer_store_dwordx4 {v(A_+4,4)}, v{VL}, {s(SO,4)}, s{3 + j//4} offen offset:{(j%4)*1024} {fl}")
    L += resolve_lgkm(Ep)
    E("K4_done:")
    for e in check_hazards(L, "K4"): print(e)
    return L
```

```python
import sys
from common import *
import k1
NAME = "sequential_preLN__compressed_kv_cla__glu_gated_bilinear__prompt"
def build(which, opts={}):
    hdr = open("cdna_kernels/" + NAME + ".s.ref").read().split("; Override launch")[0]
    launches = []; code = []
    for name, fn, lds in which:
        launches.append(f"; @launch kernel={name}_kernel grid=(256,1,1) block=(256,1,1) lds={lds}\n")
        code.append(kernel(name + "_kernel", fn(opts)))
    return hdr + "".join(launches) + '.amdgcn_target "amdgcn-amd-amdhsa--gfx950"\n' + "".join(code)
if __name__ == "__main__":
    ks = [("k1", k1.gen_k1, 131072)]
    try:
        import k2; ks.append(("k2", k2.gen_k2, 163840))
        import k3; ks.append(("k3", k3.gen_k3, 163840))
        import k4; ks.append(("k4", k4.gen_k4, 163840))
        import k5; ks.append(("k5", k5.gen_k5, 163840))
    except ImportError as e:
        print("missing", e)
    out = sys.argv[1] if len(sys.argv) > 1 else "cur.s"
    open(out, "w").write(build(ks))
```

```python
from asmlib import *
MF = "v_mfma_f32_32x32x16_bf16"
KA_X, KA_CKV, KA_WQ, KA_WUK, KA_WUV, KA_WO, KA_BX, KA_WG, KA_WU, KA_WD, KA_OUT, KA_DBG, KA_WS = [8 * i for i in range(13)]
WS_K = 0x0000000
WS_V = 0x1000000
WS_XN = 0x2000000
WS_Q = 0x3000000
WS_CTX = 0x4000000
WS_H = 0x5000000
WS_ST = 0x5200000
WS_CS = 0x5300000
WS_HH = 0x6000000
WS_STAMP = 0x8000000

def kernel(name, lines, vgpr=512, accum=256, sgpr=102):
    body = "\n".join((l if l.rstrip().endswith(":") or l.startswith(".") else "    " + l) for l in lines)
    return f""".text
.globl {name}
.p2align 8
.type {name},@function
{name}:
{body}
    s_endpgm
.section .rodata,"a"
.p2align 6
.amdhsa_kernel {name}
  .amdhsa_next_free_vgpr {vgpr}
  .amdhsa_next_free_sgpr {sgpr}
  .amdhsa_accum_offset {accum}
  .amdhsa_group_segment_fixed_size 0
  .amdhsa_kernarg_size 104
  .amdhsa_user_sgpr_count 2
  .amdhsa_user_sgpr_kernarg_segment_ptr 1
  .amdhsa_system_sgpr_workgroup_id_x 1
  .amdhsa_float_denorm_mode_32 3
.end_amdhsa_kernel
"""

def srd(d, b, off, size):
    L = []
    if off is None or off == 0:
        L += [f"s_mov_b32 s{d}, s{b}", f"s_mov_b32 s{d+1}, s{b+1}"]
    else:
        o = off if isinstance(off, str) else hex(off)
        L += [f"s_add_u32 s{d}, s{b}, {o}", f"s_addc_u32 s{d+1}, s{b+1}, 0"]
    L += [f"s_mov_b32 s{d+2}, {hex(size)}", f"s_mov_b32 s{d+3}, 0x00020000"]
    return L

def resolve_lgkm(lines, prefix=None):
    pre = list(prefix) if prefix is not None else []
    allv = pre + list(lines)
    out = []
    for idx in range(len(pre), len(allv)):
        l = allv[idx]
        if l.startswith("WAITL"):
            tag = l.split()[1]
            n = 0; found = False
            for j in range(idx - 1, -1, -1):
                t = allv[j]
                if t.startswith("ds_"):
                    if t.rstrip().endswith("RD:" + tag):
                        found = True; break
                    n += 1
            assert found, tag
            n = min(n, 15)
            out.append(f"s_waitcnt lgkmcnt({n})")
        else:
            out.append(l)
    return out

def wave_reduce_add(regs, tmp):
    L = []
    for mod in ("quad_perm:[1,0,3,2]", "quad_perm:[2,3,0,1]", "row_half_mirror", "row_mirror"):
        L.append("s_nop 1")
        for r in regs:
            L.append(f"v_add_f32_dpp {v(r)}, {v(r)}, {v(r)} {mod} row_mask:0xf bank_mask:0xf")
    for sw in ("v_permlane16_swap_b32", "v_permlane32_swap_b32"):
        for r, t in zip(regs, tmp):
            L.append(f"v_mov_b32 {v(t)}, {v(r)}")
        L.append("s_nop 1")
        for r, t in zip(regs, tmp):
            L.append(f"{sw} {v(r)}, {v(t)}")
        L.append("s_nop 1")
        for r, t in zip(regs, tmp):
            L.append(f"v_add_f32 {v(r)}, {v(r)}, {v(t)}")
    return L

def fold_m0(items):
    first = []
    out = []
    for it in items:
        if it[0].startswith("s_mov_b32 m0") or it[0].startswith("s_add_u32 m0"):
            if out: out[-1] = out[-1] + it
            else: first += it
        else:
            out.append(list(it))
    return first, out

def fix_m0(lines):
    out = []
    for l in lines:
        if out and " lds" in l and l.startswith("buffer_load") and (out[-1].startswith("s_mov_b32 m0") or out[-1].startswith("s_add_u32 m0")):
            out.append("s_nop 0")
        out.append(l)
    return out

def stamp(opts, i):
    if not opts.get("stamps"): return []
    return ["s_memrealtime s[98:99]", "s_waitcnt lgkmcnt(0)", f"v_writelane_b32 v255, s98, {i}"]

def stamp_out(opts, kidx, s_w):
    if not opts.get("stamps"): return []
    L = ["s_mov_b64 exec, -1", "s_waitcnt vmcnt(0)"] + stamp(opts, 15)
    L += [f"s_load_dwordx2 s[96:97], s[0:1], {KA_WS}", "s_waitcnt lgkmcnt(0)"]
    L += srd(92, 96, WS_STAMP + kidx * 65536, 65536)
    L += ["v_mbcnt_lo_u32_b32 v254, -1, 0", "v_lshlrev_b32 v254, 2, v254", "s_lshl_b32 s98, s2, 8", f"s_lshl_b32 s99, s{s_w}, 6",
          "s_add_u32 s98, s98, s99", "s_mov_b64 exec, 0xffff", "buffer_store_dword v255, v254, s[92:95], s98 offen"]
    return L

def flat(items): return [x for it in items for x in it]

def is_vm(t):
    return (t.startswith("buffer_") or t.startswith("global_")) and not t.startswith("buffer_inv")

def resolve_vm(lines):
    out = []
    for idx, l in enumerate(lines):
        if l.startswith("WAITV"):
            parts = l.split()
            tags = parts[1].split(",")
            best = None
            for tag in tags:
                n = 0; found = False
                for j in range(idx - 1, -1, -1):
                    t = lines[j]
                    if is_vm(t):
                        if ("VM:" + tag) in t.split(";")[-1].split():
                            found = True; break
                        if "VMX" not in t: n += 1
                assert found, tag
                best = n if best is None else min(best, n)
            out.append(f"s_waitcnt vmcnt({min(best,63)})" + (" lgkmcnt(0)" if "L0" in parts else ""))
        else:
            out.append(l)
    return out
```

```python
from common import *
import struct, math
def f2u(x): return struct.unpack("<I", struct.pack("<f", x))[0]

WS_FL = 0x5400000
WS_WOF = 0x7000000
WS_WDF = 0x7400000
P_X, P_CKV, P_WQ, P_WUK, P_WUV, P_WO, P_BX, P_WG, P_WU, P_WD, P_OUT, P_DBG, P_WS = [68 + 2 * i for i in range(13)]
PW = 94
SFL = 64
VL = 238; VPO = 239; VN = 250; VPD = 252; VDUMP = 254
SN = 96
FL_XN, FL_KV, FL_H, FL_HH, FL_CS, FL_CTX = 0, 2048, 4096, 6144, 8192, 16384
WT = "sc0 sc1"
_lab = [0]
def newlab(p):
    _lab[0] += 1
    return f"{p}_{_lab[0]}"

def poll_ld(srd_, soff): return f"buffer_load_dwordx2 v[{VPD}:{VPD+1}], v{VPO}, {s(srd_,4)}, {soff} offen sc1"

def poll_issue(srd_, soff, nlanes, tag, addr=None):
    if addr is None:
        addr = [f"v_lshrrev_b32 v{VPO}, 1, v{VL}", f"v_and_b32 v{VPO}, {(nlanes-1)*8}, v{VPO}"]
    return addr + [poll_ld(srd_, soff) + f" ; VM:{tag}"]

def poll_check(srd_, soff, tag, slow=None, cmp=None):
    ok = newlab("ok"); sp = newlab("spin")
    if cmp is None: cmp = f"v_cmp_ne_u64 vcc, s[{SN}:{SN+1}], v[{VPD}:{VPD+1}]"
    L = [f"WAITV {tag}", cmp, f"s_cbranch_vccnz {sp}", f"{ok}:"]
    S_ = [f"{sp}:", "s_mov_b32 s100, 0x40000", f"{sp}b:", poll_ld(srd_, soff), "s_waitcnt vmcnt(0)", cmp, f"s_cbranch_vccz {ok}",
          "s_sub_u32 s100, s100, 1", "s_cmp_eq_u32 s100, 0", f"s_cbranch_scc1 {ok}", "s_sleep 1", f"s_branch {sp}b"]
    slow.extend(S_)
    return L

def flag_set(soff_lines, soff, wave=0):
    sk = newlab("nf")
    return [f"s_cmp_lg_u32 s{PW}, {wave}", f"s_cbranch_scc1 {sk}"] + soff_lines + \
           [f"buffer_store_dwordx2 v[{VN}:{VN+1}], off, {s(SFL,4)}, {soff} {WT} ; VMX", f"{sk}:"]

def code_touch(label, nkb, tmp):
    sk = newlab("ct"); here = newlab("pc")
    n = (nkb + 7) // 8
    return ["s_lshr_b32 s3, s2, 3", "s_lshl_b32 s3, s3, 2", f"s_add_u32 s3, s3, s{PW}", f"s_cmp_ge_u32 s3, {n}", f"s_cbranch_scc1 {sk}",
            "s_getpc_b64 s[4:5]", f"{here}:", f"s_add_u32 s4, s4, {label}-{here}", "s_addc_u32 s5, s5, 0",
            "s_lshl_b32 s3, s3, 13", f"v_lshl_add_u32 v{tmp}, v{VL}, 3, s3",
            f"global_load_dword v{VDUMP}, v{tmp}, s[4:5] ; VMX", f"{sk}:"]

def fo_xn(): return ["s_lshl_b32 s3, s2, 3"]
def fo_kv(S_HEAD, S_I): return [f"s_lshl_b32 s3, s{S_HEAD}, 6", f"s_lshl_b32 s4, s{S_I}, 3", "s_add_u32 s3, s3, s4", f"s_add_u32 s3, s3, {FL_KV}"]
def fo_ctx(S_HEAD, sblk): return [f"s_lshl_b32 s3, {sblk}, 8", f"s_lshl_b32 s4, s{S_HEAD}, 3", "s_add_u32 s3, s3, s4", f"s_add_u32 s3, s3, {FL_CTX}"]
MAP3 = [1]
def map3(rt, ct):
    if MAP3[0] == 1:
        return [f"s_bfe_u32 s{ct}, s2, 0x30003", "s_and_b32 s3, s2, 7", "s_lshl_b32 s3, s3, 2", "s_lshr_b32 s4, s2, 6", f"s_add_u32 s{rt}, s3, s4"]
    if MAP3[0] == 2:
        return ["s_and_b32 s3, s2, 1", "s_bfe_u32 s4, s2, 0x20003", "s_lshl_b32 s4, s4, 1", f"s_add_u32 s{ct}, s3, s4",
            "s_bfe_u32 s3, s2, 0x20001", "s_lshl_b32 s3, s3, 3", "s_lshr_b32 s4, s2, 5", f"s_add_u32 s{rt}, s3, s4"]
    return ["s_and_b32 s3, s2, 1", "s_lshl_b32 s3, s3, 2", "s_bfe_u32 s4, s2, 0x20003", f"s_add_u32 s{ct}, s3, s4",
            "s_bfe_u32 s3, s2, 0x20001", "s_lshl_b32 s3, s3, 3", "s_lshr_b32 s4, s2, 5", f"s_add_u32 s{rt}, s3, s4"]
def map4(g, ct):
    return ["s_and_b32 s3, s2, 3", "s_lshl_b32 s3, s3, 2", "s_bfe_u32 s4, s2, 0x20003", f"s_add_u32 s{ct}, s3, s4",
            "s_bfe_u32 s3, s2, 0x10002", "s_lshl_b32 s3, s3, 3", "s_lshr_b32 s4, s2, 5", f"s_add_u32 s{g}, s3, s4"]
def fo_h(rt, ct): return [f"s_lshl_b32 s3, s{rt}, 6", f"s_lshl_b32 s4, s{ct}, 3", "s_add_u32 s3, s3, s4", f"s_add_u32 s3, s3, {FL_H}"]
def fo_hh(g, ct): return [f"s_lshl_b32 s3, s{g}, 7", f"s_lshl_b32 s4, s{ct}, 3", "s_add_u32 s3, s3, s4", f"s_add_u32 s3, s3, {FL_HH}"]
def fo_cs(): return ["s_mul_i32 s3, s2, 1171", "s_lshr_b32 s3, s3, 16", "s_mul_i32 s4, s3, 56", "s_sub_u32 s4, s2, s4", "s_lshl_b32 s4, s4, 2", "s_add_u32 s3, s3, s4",
        "s_cmp_ge_u32 s2, 224", "s_cselect_b32 s3, s2, s3", "s_lshl_b32 s3, s3, 3", f"s_add_u32 s3, s3, {FL_CS}"]

SA, SB, SK, SV, SXN, SWQ = 8, 12, 16, 20, 24, 28
S_HEAD, S_I = 32, 33
S_AO, S_AO2, S_BO, S_BO2, S_WB, S_QW, S_X0, S_X1, S_ST0, S_ST1, S_ST2, S_QL = 34, 35, 36, 37, 38, 39, 40, 41, 42, 43, 44, 45
SX = 48
SPARE = 131072; SLOT = 32768

def phase1(opts, slow):
    T0Q = 220
    L = []; E = L.append
    def acc(t): return v(t * 16, 16) if t < 14 else a(64 + (t - 14) * 16, 16)
    def frag(buf, i): return buf * 32 + i * 4
    VA, VB, VDA, VDB = 224, 228, 230, 234
    T = 40
    VT1, VT2 = 240, 241
    E("s_load_dwordx16 s[68:83], s[0:1], 0")
    E("s_load_dwordx8 s[84:91], s[0:1], 64")
    E("s_load_dwordx2 s[92:93], s[0:1], 96")
    if opts.get("inv"): E("buffer_inv sc1")
    lane = VL
    E(f"v_and_b32 v{VL}, 63, v0")
    E(f"v_lshrrev_b32 v{T}, 6, v0")
    E("s_and_b32 s3, s2, 7")
    E(f"v_readfirstlane_b32 s{PW}, v{T}")
    E("s_lshl_b32 s3, s3, 2")
    E("s_bfe_u32 s4, s2, 0x20003")
    E(f"s_add_u32 s{S_HEAD}, s3, s4")
    E(f"s_lshr_b32 s{S_I}, s2, 5")
    E(f"v_lshrrev_b32 v{T}, 3, v{lane}")
    E(f"v_lshrrev_b32 v{T+1}, 4, v{lane}")
    E(f"v_and_b32 v{T+2}, 7, v{lane}")
    E(f"v_xor_b32 v{T+2}, v{T+2}, v{T+1}")
    E(f"v_lshlrev_b32 v{T+2}, 4, v{T+2}")
    E(f"v_lshl_add_u32 v{T+3}, v{T}, 10, v{T+2}")
    E(f"s_lshl_b32 s3, s{PW}, 16")
    E(f"v_add_u32 v{VDA}, s3, v{T+3}")
    E(f"v_xor_b32 v{T+4}, 64, v{VDA}")
    E(f"v_add_u32 v{VDA+1}, {8192 - 1024}, v{T+4}")
    E(f"v_add_u32 v{VDA+2}, {2 * (8192 - 1024)}, v{VDA}")
    E(f"v_add_u32 v{VDA+3}, {3 * (8192 - 1024)}, v{T+4}")
    E(f"v_and_b32 v{T+2}, 15, v{lane}")
    E(f"v_lshlrev_b32 v{T+3}, 2, v{T+1}")
    E(f"v_xor_b32 v{T+2}, v{T+2}, v{T+3}")
    E(f"v_lshlrev_b32 v{T+2}, 4, v{T+2}")
    E(f"v_lshl_add_u32 v{T+3}, v{T+1}, 13, v{T+2}")
    E(f"s_and_b32 s3, s{PW}, 1")
    E(f"s_lshl_b32 s3, s3, 18")
    E(f"v_add_u32 v{VDB}, s3, v{T+3}")
    for q in range(1, 4): E(f"v_add_u32 v{VDB+q}, {q * (4 * 8192 - 1024)}, v{VDB}")
    E(f"v_mov_b32 v{T+10}, v{lane}")
    E(f"v_lshlrev_b32 v{VL}, 4, v{lane}")
    lane = T + 10
    E(f"s_lshl_b32 s{S_AO}, s{S_I}, 18")
    E(f"s_add_u32 s{S_AO2}, s{S_AO}, 0x8000")
    E(f"s_lshl_b32 s{S_BO}, s{S_HEAD}, 8")
    E(f"s_add_u32 s{S_BO2}, s{S_BO}, {16 * 8192}")
    E(f"s_lshl_b32 s{S_WB}, s{PW}, 13")
    E(f"s_lshl_b32 s5, s2, 13")
    E(f"s_lshl_b32 s4, s{PW}, 11")
    E(f"s_add_u32 s5, s5, s4")
    E("s_waitcnt lgkmcnt(0)")
    L += srd(52, P_DBG, 0, 256)
    E(f"s_or_b32 s3, s2, s{PW}")
    E("s_cmp_lg_u32 s3, 0")
    E("s_cbranch_scc1 P1_nn")
    E("s_memrealtime s[6:7]")
    E("s_waitcnt lgkmcnt(0)")
    E("s_or_b32 s6, s6, 1")
    E(f"v_mov_b32 v{VN}, s6")
    E(f"v_mov_b32 v{VN+1}, s7")
    E(f"buffer_store_dwordx2 v[{VN}:{VN+1}], off, s[52:55], 0 {WT} ; VMX")
    E("P1_nn:")
    L += srd(SX, P_X, 0, 0x200000)
    E(f"buffer_load_dwordx4 v[0:3], v{VL}, {s(SX,4)}, s5 offen ; VM:x")
    E(f"buffer_load_dwordx4 v[4:7], v{VL}, {s(SX,4)}, s5 offen offset:1024 ; VM:x")
    L += srd(SA, P_CKV, 0, 0x200000)
    E(f"s_cmp_ge_u32 s{PW}, 2")
    E(f"s_cselect_b32 s{SB}, s{P_WUV}, s{P_WUK}")
    E(f"s_cselect_b32 s{SB+1}, s{P_WUV+1}, s{P_WUK+1}")
    E(f"s_mov_b32 s{SB+2}, 0x400000")
    E(f"s_mov_b32 s{SB+3}, 0x00020000")
    def dma(st):
        slot = st & 1
        it = []
        for half in (0, 1):
            it.append([f"s_add_u32 m0, s{S_WB}, {slot*32768 + half*4096}"])
            for q in range(4):
                it.append([f"buffer_load_dwordx4 v{VDA+q}, {s(SA,4)}, s{S_AO2 if half else S_AO} offen offset:{q*1024} lds ; VM:S{st}"])
        for half in (0, 1):
            it.append([f"s_add_u32 m0, s{S_WB}, {65536 + slot*32768 + half*4096}"])
            for q in range(4):
                it.append([f"buffer_load_dwordx4 v{VDB+q}, {s(SB,4)}, s{S_BO2 if half else S_BO} offen offset:{q*1024} lds ; VM:S{st}"])
        it[-1] += [f"s_add_u32 s{S_AO}, s{S_AO}, 128", f"s_add_u32 s{S_AO2}, s{S_AO2}, 128",
                   f"s_add_u32 s{S_BO}, s{S_BO}, {64 * 8192}", f"s_add_u32 s{S_BO2}, s{S_BO2}, {64 * 8192}"]
        return it
    L += flat(dma(0))
    if opts.get("ctouch", 1): L += code_touch("F_c0", opts.get("code_kb", 56), T)
    E("F_c0:")
    E(f"v_and_b32 v{T}, 31, v{lane}")
    E(f"v_lshrrev_b32 v{T+2}, 5, v{lane}")
    E(f"v_bfe_u32 v{T+3}, v{lane}, 1, 3")
    E(f"v_xor_b32 v{T+3}, v{T+3}, v{T+2}")
    E(f"v_lshlrev_b32 v{T+3}, 4, v{T+3}")
    E(f"v_lshl_add_u32 v{T+3}, v{T}, 7, v{T+3}")
    E(f"s_and_b32 s3, s{PW}, 1")
    E(f"s_lshl_b32 s3, s3, 14")
    E(f"v_add_u32 v{VA}, s3, v{T+3}")
    for ks in range(1, 4): E(f"v_xor_b32 v{VA+ks}, {ks * 32}, v{VA}")
    E(f"v_bfe_u32 v{T}, v{lane}, 2, 2")
    E(f"v_lshl_add_u32 v{T+3}, v{T+2}, 3, v{T}")
    E(f"v_lshlrev_b32 v{T+3}, 8, v{T+3}")
    E(f"v_bfe_u32 v{T+4}, v{lane}, 4, 1")
    E(f"v_lshl_add_u32 v{T+3}, v{T+4}, 5, v{T+3}")
    E(f"v_and_b32 v{T+4}, 3, v{lane}")
    E(f"v_lshl_add_u32 v{T+3}, v{T+4}, 3, v{T+3}")
    E(f"s_and_b32 s3, s{PW}, 2")
    E(f"v_xor_b32 v{T}, s3, v{T}")
    E(f"v_lshl_add_u32 v{T+3}, v{T}, 6, v{T+3}")
    E(f"v_add_u32 v{VB}, 0x10000, v{T+3}")
    E(f"v_xor_b32 v{VB+1}, 64, v{VB}")
    RL = SPARE + 0x2400
    E(f"v_lshrrev_b32 v{T}, 4, v{lane}")
    E(f"v_and_b32 v{T+1}, 15, v{lane}")
    E(f"v_lshlrev_b32 v{T+3}, 2, v{T}")
    E(f"v_xor_b32 v{T+1}, v{T+1}, v{T+3}")
    E(f"v_lshlrev_b32 v{T+1}, 4, v{T+1}")
    E(f"v_lshl_add_u32 v244, v{T}, 10, v{T+1}")
    E(f"s_and_b32 s3, s{PW}, 2")
    E(f"s_lshl_b32 s3, s3, 6")
    E(f"v_xor_b32 v245, s3, v{VB}")
    E(f"v_lshlrev_b32 v{T}, 10, v{T+2}")
    E(f"v_sub_u32 v245, v245, v{T}")
    E(f"s_lshl_b32 s59, s{PW}, 12")
    E(f"s_add_u32 s59, s59, {RL}")
    E(f"s_sub_u32 s3, s59, 0x10000")
    E(f"v_add_u32 v245, s3, v245")
    for b in range(1, 4): E(f"v_xor_b32 v{245+b}, {b*64}, v245")
    def rl_load(ptr, nks, tag):
        it = [srd(60, ptr, 0, nks * 16 * 1024) + ["s_lshl_b32 s7, s2, 14", f"s_lshl_b32 s6, s{PW}, 8", "s_add_u32 s7, s7, s6"]]
        for q in range(4):
            it.append([f"s_add_u32 m0, s59, {q*1024}", f"s_add_u32 s6, s7, {q*4096}", f"buffer_load_dwordx4 v244, s[60:63], s6 offen lds ; VM:{tag}"])
        return it
    def rl_read(tag):
        it = [[f"WAITV {tag}"]]
        for b in range(4):
            for jj in range(2):
                it.append([f"ds_read_b64_tr_b16 {a(104 + b*4 + 2*jj, 2)}, v{245+b} offset:{jj*2048} ; RD:rl{b*2+jj}"])
        return it
    def rl_store(wsoff, nks):
        it = [srd(60, P_WS, wsoff, 8 * nks * 2048) + ["WAITL rl7", f"s_cmp_ge_u32 s2, {nks}", "s_cselect_b32 s62, 0, s62",
              f"s_mul_i32 s7, s{PW}, {2 * nks * 2048}", "s_lshl_b32 s6, s2, 11", "s_add_u32 s7, s7, s6", f"s_add_u32 s6, s7, {nks * 2048}"]]
        for b in range(4):
            it.append([f"buffer_store_dwordx4 {a(104 + b*4, 4)}, v{VL}, s[60:63], s{7 - (b >> 1)} offen offset:{(b & 1)*1024} {WT}"])
        return it
    E(f"v_and_b32 v{T}, 15, v{lane}")
    E(f"v_lshlrev_b32 v{VT1}, 10, v{T}")
    E(f"v_and_b32 v{T+1}, 7, v{lane}")
    E(f"v_lshlrev_b32 v{VT2}, 7, v{T+1}")
    E("s_lshr_b32 s3, s2, 3")
    E("s_lshl_b32 s47, s3, 16")
    E(f"s_lshl_b32 s4, s{PW}, 14")
    E("s_add_u32 s47, s47, s4")
    E("s_lshl_b32 s58, s3, 14")
    E(f"s_and_b32 s4, s{PW}, 1")
    E("s_lshl_b32 s4, s4, 13")
    E("s_add_u32 s58, s58, s4")
    E("s_and_b32 s4, s2, 7")
    E("s_lshl_b32 s4, s4, 10")
    E("s_add_u32 s58, s58, s4")
    def touch(st):
        return [[f"buffer_load_dword v{VDUMP}, v{VT1}, {s(SA,4)}, s47 offen offset:{st*128}"],
                [f"s_add_u32 s3, s58, {st*64*8192}", f"buffer_load_dword v{VDUMP}, v{VT2}, {s(SB,4)}, s3 offen"]]
    def touchq(st):
        return [[f"s_lshr_b32 s3, s{PW}, 1", "s_lshl_b32 s3, s3, 19", "s_add_u32 s3, s3, s58", f"s_add_u32 s3, s3, {st*64*8192}",
                 f"buffer_load_dword v{VDUMP}, v{VT2}, {s(SWQ,4)}, s3 offen"]]
    E(f"s_lshl_b32 s3, s{S_HEAD}, 19")
    L += srd(SK, P_WS, "s3", 0x80000)
    E(f"s_add_u32 s3, s3, {hex(WS_V)}")
    L += srd(SV, P_WS, "s3", 0x80000)
    L += srd(SXN, P_WS, WS_XN, 0x200000)
    L += srd(SWQ, P_WQ, 0, 0x400000)
    L += srd(SFL, P_WS, WS_FL, 32768)
    L += stamp(opts, 1)
    E("WAITV x")
    X = 16
    for r in range(2):
        for j in range(4):
            E(f"v_lshlrev_b32 v{X + r*8 + 2*j}, 16, v{r*4 + j}")
            E(f"v_and_b32 v{X + r*8 + 2*j + 1}, 0xffff0000, v{r*4 + j}")
    for r in range(2): E(f"v_add_f32 v{32+r}, v{X+r*8}, v{X+r*8+1}")
    for j in range(2, 8):
        for r in range(2): E(f"v_add_f32 v{32+r}, v{32+r}, v{X+r*8+j}")
    L += wave_reduce_add([32, 33], [34, 35])
    for r in range(2): E(f"v_mul_f32 v{32+r}, 0x3b000000, v{32+r}")
    for j in range(8):
        for r in range(2): E(f"v_sub_f32 v{X+r*8+j}, v{X+r*8+j}, v{32+r}")
    for r in range(2): E(f"v_mul_f32 v{32+r}, v{X+r*8}, v{X+r*8}")
    for j in range(1, 8):
        for r in range(2): E(f"v_fmac_f32 v{32+r}, v{X+r*8+j}, v{X+r*8+j}")
    L += wave_reduce_add([32, 33], [34, 35])
    for r in range(2): E(f"v_mul_f32 v{32+r}, 0x3b000000, v{32+r}")
    for r in range(2): E(f"v_add_f32 v{32+r}, 0x3727c5ac, v{32+r}")
    for r in range(2): E(f"v_rsq_f32 v{32+r}, v{32+r}")
    E("s_nop 0")
    for j in range(8):
        for r in range(2): E(f"v_mul_f32 v{X+r*8+j}, v{X+r*8+j}, v{32+r}")
    O_ = 8
    for r in range(2):
        for j in range(4): E(f"v_cvt_pk_bf16_f32 v{O_ + r*4 + j}, v{X+r*8+2*j}, v{X+r*8+2*j+1}")
    E(f"s_mul_i32 s3, s{PW}, 2080")
    E(f"s_add_u32 s3, s3, {SPARE}")
    E(f"v_add_u32 v{T+8}, s3, v{VL}")
    E(f"ds_write_b128 v{T+8}, {v(O_,4)}")
    E(f"ds_write_b128 v{T+8}, {v(O_+4,4)} offset:1040")
    E(f"v_and_b32 v{T}, 7, v{lane}")
    E(f"v_lshrrev_b32 v{T+1}, 3, v{lane}")
    E(f"v_mul_u32_u24 v{T+2}, 1040, v{T}")
    E(f"v_lshl_add_u32 v{T+2}, v{T+1}, 4, v{T+2}")
    E(f"s_lshl_b32 s3, s{PW}, 8")
    E(f"s_add_u32 s3, s3, {SPARE}")
    E(f"v_add_u32 v242, s3, v{T+2}")
    E(f"v_lshlrev_b32 v{T+1}, 9, v{T+1}")
    E(f"v_lshl_add_u32 v243, v{T}, 4, v{T+1}")
    E(f"s_lshr_b32 s3, s2, 2")
    E(f"s_lshl_b32 s3, s3, 15")
    E(f"s_and_b32 s4, s2, 3")
    E(f"s_lshl_b32 s4, s4, 7")
    E(f"s_add_u32 s3, s3, s4")
    E(f"s_lshl_b32 s4, s{PW}, 13")
    E(f"s_add_u32 s56, s3, s4")
    E(f"s_add_u32 s57, s56, 4096")
    L += flat(dma(1))
    E(f"s_sub_u32 s5, 15, s{S_I}")
    E(f"s_lshl_b32 s5, s5, 17")
    E(f"s_lshl_b32 s4, s{PW}, 15")
    E(f"s_add_u32 s{S_X0}, s5, s4")
    E(f"s_lshl_b32 s5, s{S_I}, 17")
    E(f"s_add_u32 s{S_X1}, s5, s4")
    E(f"s_and_b32 s4, s{PW}, 1")
    E(f"s_lshr_b32 s5, s{PW}, 1")
    E(f"s_lshl_b32 s{S_QW}, s5, 17")
    E(f"s_lshl_b32 s3, s{S_HEAD}, 8")
    E(f"s_add_u32 s{S_QW}, s{S_QW}, s3")
    E(f"s_lshl_b32 s4, s4, 13")
    E(f"s_lshl_b32 s5, s5, 12")
    E(f"s_add_u32 s{S_QL}, s4, s5")
    def reads(st, ks, buf):
        slot = st & 1; tag = f"s{st}k{ks}"
        r = []
        for i in range(4):
            r.append(f"ds_read_b128 {a(frag(buf, i), 4)}, v{VA+ks} offset:{slot*32768 + i*4096} ; RD:{tag}_{i}")
        for part in range(2):
            for j in range(2):
                for jj in range(2):
                    off = slot * 32768 + part * 16384 + (16 * ks + 4 * jj) * 256
                    r.append(f"ds_read_b64_tr_b16 {a(frag(buf, 4 + part*2 + j) + 2*jj, 2)}, v{VB+j} offset:{off}")
        return [r[0]] + r[4:12] + r[1:4]
    def mfmas(buf, first):
        m = []
        for i in range(4):
            for j in range(2):
                m.append(f"{MF} {acc(i*4+j)}, {a(frag(buf,4+j),4)}, {a(frag(buf,i),4)}, {0 if first else acc(i*4+j)}")
            for j in range(2):
                m.append(f"{MF} {acc(i*4+2+j)}, {a(frag(buf,i),4)}, {a(frag(buf,6+j),4)}, {0 if first else acc(i*4+2+j)}")
        return m
    QREG = [SPARE, SPARE + 16384, 0, 16384, 65536, 81920, 98304, 114688]
    XSLOT = [96, 128, 160, 192, 224, 32, 64, 96]
    VW = 224
    def wq_dma(g):
        it = [[f"s_add_u32 m0, s{S_QL}, {QREG[g]}"]]
        for q in range(4):
            it.append([f"buffer_load_dwordx4 v{VDB+q}, {s(SWQ,4)}, s{S_QW} offen offset:{q*1024} lds ; VM:W{g}"])
        it[-1].append(f"s_add_u32 s{S_QW}, s{S_QW}, {64*8192}")
        return it
    def xn_ld(g):
        it = []
        for ks in range(4):
            for tb in range(2):
                it.append([f"buffer_load_dwordx4 {a(XSLOT[g] + (ks*2+tb)*4, 4)}, v{VL}, {s(SXN,4)}, s{S_X0+tb} offen offset:{ks*1024} ; VM:X{g}"])
        it[-1] += [f"s_add_u32 s{S_X0}, s{S_X0}, 4096", f"s_add_u32 s{S_X1}, s{S_X1}, 4096"]
        return it
    QBASE = lambda g: SPARE if g < 2 else (0 if g < 4 else 65536)
    def wreads(k):
        g = k // 4; buf = k & 1
        r = []
        for b in range(4):
            for jj in range(2):
                off = QREG[g] - QBASE(g) + (16 * (k % 4) + 4 * jj) * 256
                r.append(f"ds_read_b64_tr_b16 {a(buf*16 + b*4 + 2*jj, 2)}, v{VW+b} offset:{off} ; RD:w{k}_{b*2+jj}")
        return r
    L += stamp(opts, 2)
    E("WAITV S0 L0")
    E("s_barrier")
    L += stamp(opts, 3)
    E("ds_read_b128 a[96:99], v242")
    E("ds_read_b128 a[100:103], v242 offset:128")
    L += reads(0, 0, 0)
    for k in range(32):
        st, ks = k // 4, k % 4
        buf = ks & 1
        pre = {0: [f"WAITL s{st}k{ks}_11"], 4: [f"WAITL s{st}k{ks}_3"]}
        fixed = []; extra = []; post = []
        if k < 31:
            rd = reads(st, ks + 1, buf ^ 1) if ks < 3 else reads(st + 1, 0, buf ^ 1)
            fixed += [(g, [rd[g]]) for g in range(12)]
        else:
            setup = [f"s_and_b32 s3, s{PW}, 2", "s_lshl_b32 s3, s3, 6", f"v_xor_b32 v{VW}, s3, v{VB}", f"v_add_u32 v{VW}, 0x10000, v{VW}"]
            setup += [f"v_xor_b32 v{VW+b}, {b*64}, v{VW}" for b in range(1, 4)]
            fixed += [(0, setup)]
            rd = wreads(0)
            fixed += [(2 + g, [rd[g]]) for g in range(8)]
        if ks == 3:
            pre = {0: [f"WAITV {'S%d' % (st+1) if st < 7 else 'W1'} L0", "s_barrier"]}
            if st + 2 < 8:
                f0, d = fold_m0(dma(st + 2)); pre[0] = f0 + pre[0]; extra = d
        TD = opts.get("touch_d", 3)
        if ks == 0 and st + TD < 8 and opts.get("pf_own", 1): extra = touch(st + TD)
        if k == 1 and TD == 3 and opts.get("pf_own", 1): extra = touch(2)
        if ks == 1 and 1 <= st <= 4 and opts.get("pf_own", 1): extra = touchq((st - 1) * 2)
        if k == 2:
            extra = [[f"buffer_store_dwordx4 a[96:99], v243, {s(SXN,4)}, s56 offen {WT}"],
                     [f"buffer_store_dwordx4 a[100:103], v243, {s(SXN,4)}, s57 offen {WT}"],
                     poll_issue(52, "0", 1, "pn", addr=[f"v_mov_b32 v{VPO}, 0"])]
        if k == 6:
            extra = [poll_check(52, "0", "pn", slow=slow, cmp=f"v_cmp_eq_u32 vcc, 0, v{VPD}"),
                     [f"v_readfirstlane_b32 s{SN}, v{VPD}", f"v_readfirstlane_b32 s{SN+1}, v{VPD+1}",
                      f"v_mov_b32 v{VN}, v{VPD}", f"v_mov_b32 v{VN+1}, v{VPD+1}"]]
        if k == 10: extra = [flag_set(fo_xn(), "s3")]
        if k == 18:
            extra = [poll_issue(SFL, "0", 8, "pxn", addr=[f"v_and_b32 v{VPO}, 64, v{VL}", f"v_cmp_eq_u32 vcc, 0, v{VPO}", f"v_mov_b32 v{VPD}, s{S_X1}",
                     f"v_mov_b32 v{VPD+1}, s{S_X0}", f"v_cndmask_b32 v{VPO}, v{VPD}, v{VPD+1}, vcc", f"v_lshrrev_b32 v{VPO}, 10, v{VPO}",
                     f"v_bfe_u32 v{VPD}, v{VL}, 4, 2", f"v_lshl_add_u32 v{VPO}, v{VPD}, 3, v{VPO}"])]
        if k == 20: extra = [poll_check(SFL, "0", "pxn", slow=slow)]
        if k == 4: extra += rl_load(P_WO, 256, "rlo")
        if k == 9: extra += rl_read("rlo")
        if k == 10: extra += rl_store(WS_WOF, 256)
        if k == 12: extra += rl_load(P_WD, 112, "rld")
        if k == 17: extra += rl_read("rld")
        if k == 18: extra += rl_store(WS_WDF, 112)
        if k in (21, 22):
            f0, d = fold_m0(wq_dma(k - 21)); extra = [f0] + d
        if k in (24, 25, 26): extra = xn_ld(k - 24)
        if k == 27:
            f0, d = fold_m0(wq_dma(2) + wq_dma(3)); extra = [f0] + d
        if k == 28: extra = xn_ld(3)
        if k == 29:
            f0, d = fold_m0(wq_dma(4) + wq_dma(5)); extra = [f0] + d
        if k == 30: extra = xn_ld(4)
        if k == 31:
            f0, d = fold_m0(wq_dma(6) + wq_dma(7)); extra = [f0] + d
        n = len(extra)
        fixed += [(min(15, (i * 16) // max(n, 1)), e) for i, e in enumerate(extra)]
        out, _ = schedule(mfmas(buf, k == 0), fixed, [], pre=pre)
        L += out
        if ks == 3 and opts.get("fine"): L += stamp(opts, 52 + st)
    L += stamp(opts, 4)
    E(f"s_and_b32 s3, s{PW}, 1")
    E(f"s_lshl_b32 s3, s3, 15")
    E(f"s_lshl_b32 s4, s{S_I}, 16")
    E(f"s_add_u32 s3, s3, s4")
    E(f"s_lshr_b32 s4, s{PW}, 1")
    E(f"s_lshl_b32 s5, s4, 12")
    E(f"s_add_u32 s{S_ST0}, s5, s3")
    E(f"s_lshl_b32 s6, s4, 11")
    E(f"s_add_u32 s{S_ST1}, s6, s3")
    def store(t, half, reg, tag):
        i, j = t // 4, t % 4
        if j < 2: base, sr, off = S_ST0, SK, i * 8192 + (2 * j + half) * 1024
        else: base, sr, off = S_ST1, SV, i * 8192 + half * 4096 + (j - 2) * 1024
        return [f"s_add_u32 s{S_ST2}, s{base}, {off & ~4095}",
                f"buffer_store_dwordx4 {v(reg,4)}, v{VL}, {s(sr,4)}, s{S_ST2} offen offset:{off & 4095} {WT} ; VM:{tag}"]
    def cvt(src, dst):
        return [f"v_cvt_pk_bf16_f32 v{dst + q}, v{src + 2*q}, v{src + 2*q + 1}" for q in range(8)]
    pend = []
    for t in (6, 7):
        L += cvt(t * 16, t * 16)
        L += store(t, 0, t * 16, "kv") + store(t, 1, t * 16 + 4, "kv")
    for n, t in enumerate(range(8, 14)):
        L += cvt(t * 16, 128 + n * 8)
        pend += [store(t, 0, 128 + n * 8, "kv"), store(t, 1, 128 + n * 8 + 4, "kv")]
    for n, t in enumerate(range(0, 6)):
        L += cvt(t * 16, 176 + n * 8)
        pend += [store(t, 0, 176 + n * 8, "kv"), store(t, 1, 176 + n * 8 + 4, "kv")]
    for t in (14, 15):
        b = 64 + (t - 14) * 16
        for r in range(16): E(f"v_accvgpr_read_b32 v{b + r}, a{64 + (t-14)*16 + r}")
        L += cvt(b, b)
        L += store(t, 0, b, "kv") + store(t, 1, b + 4, "kv")
    L += stamp(opts, 5)
    for k in range(32):
        g = k // 4; buf = k & 1
        mf = []
        for b in range(4):
            for tb in range(2):
                d = v((b * 2 + tb) * 16, 16)
                mf.append(f"{MF} {d}, {a(buf*16 + b*4,4)}, {a(XSLOT[g] + ((k%4)*2+tb)*4,4)}, {d if k else 0}")
        pre = {0: [f"WAITL w{k}_3"], 4: [f"WAITL w{k}_7"]}
        if k % 4 == 0: pre[0] = [f"WAITV X{g}"] + pre[0]
        fixed = []; extra = []
        if k < 31:
            if k % 8 == 7:
                tags = f"W{g+2}" + (",kv" if k == 23 else "")
                pre = {0: [f"WAITV {tags} L0", "s_barrier"]}
                if QBASE(g + 1) != QBASE(g):
                    dl = (QBASE(g + 1) - QBASE(g)) & 0xffffffff
                    pre[0] = [f"v_add_u32 v{VW+b}, {hex(dl)}, v{VW+b}" for b in range(4)] + pre[0]
            rd = wreads(k + 1)
            fixed += [(i, [rd[i]]) for i in range(8)]
        if k in (0, 1): extra = xn_ld(5 + k)
        elif k == 4: extra = xn_ld(7)
        elif 2 <= k < 23:
            kk = k - 2 if k < 4 else k - 3
            rate = opts.get("st_rate", 1.34)
            extra = pend[int(kk * rate): int((kk + 1) * rate)]
        if k == 23: extra = [flag_set(fo_kv(S_HEAD, S_I), "s3")]
        if 24 <= k < 29: extra = [attn_setup(opts)[k - 24]]
        if k == 29: extra = [[f"s_lshl_b32 s{S_ST2}, s{S_HEAD}, 6", f"s_add_u32 s{S_ST2}, s{S_ST2}, {FL_KV}"] + poll_issue(SFL, f"s{S_ST2}", 8, "pkv")]
        n = len(extra)
        fixed += [(min(7, (i * 8) // max(n, 1)), e) for i, e in enumerate(extra)]
        out, _ = schedule(mf, fixed, [], pre=pre)
        L += out
        if k % 8 == 7 and k < 31 and opts.get("fine"): L += stamp(opts, 60 + k // 8)
    L += stamp(opts, 6)
    L += poll_check(SFL, f"s{S_ST2}", "pkv", slow=slow)
    L += stamp(opts, 17)
    L += flat(dma_items(0, SK, S_KOFF, "K0"))
    c = math.log2(math.e) / math.sqrt(128.0)
    E(f"s_mov_b32 s3, {hex(f2u(c))}")
    kvd = [[f"s_sub_u32 s4, 15, s{S_I}", f"s_lshl_b32 s{S_KOFF}, s4, 15", f"s_mov_b32 s{S_KOFF2}, s{S_KOFF}"]] + dma_items(2, SK, S_KOFF, "K1")
    E(f"v_mov_b32 v{T0Q}, s3")
    for t in range(8):
        b, tb = t // 2, t % 2
        for r in range(0, 16, 2): E(f"v_pk_mul_f32 {v(t*16+r,2)}, {v(t*16+r,2)}, {v(T0Q,2)} op_sel_hi:[1,0]")
        for q in range(8): E(f"v_cvt_pk_bf16_f32 {v(t*16+q)}, {v(t*16+2*q)}, {v(t*16+2*q+1)}")
        for q in range(8): E(f"v_accvgpr_write_b32 {a(Q(tb, 2*b) + q)}, {v(t*16+q)}")
        if t >= 4: L += flat(kvd[(t - 4) * 3: (t - 4) * 3 + 3])
    L += stamp(opts, 18) + ["WAITV K0", "s_barrier"]
    return fix_m0(resolve_vm(resolve_lgkm(L)))

def S(par, j): return par * 64 + j * 16
P01 = [128, 144]; P23 = 160
def P(par, j, half):
    return (P01[par] + j * 8 + half * 4) if j < 2 else (P23 + (j - 2) * 8 + half * 4)
NEGM = [176, 192]
TMP = 208; LT = 214; LTOT = 216; VCHK = 218
T = 220
V_LDS = [240, 241]; V_DMA = [242, 243]
def O(rb, db): return (rb * 4 + db) * 16
A_Q = 128
def Q(rb, ds): return A_Q + (rb * 8 + ds) * 4
def F(i): return 192 + (i % 16) * 4
SC = 12
S_KOFF, S_KOFF2, S_VOFF, S_VOFF2, S_TK, S_NXT = 46, 47, 48, 49, 50, 51
S_W4, S_THR, S_T, S_SHE, S_NSH, S_COFF, S_CFL = 52, 53, 54, 55, 56, 57, 58
MSK = [8, 10, 34, 36, 40, 60, 62, 6]
OOB = 0x100000

def attn_setup(opts):
    t = VPD
    c0 = [f"v_lshrrev_b32 v{t}, 4, v{VL}", f"v_lshrrev_b32 v{t+1}, 5, v{t}", f"v_and_b32 v{t}, 31, v{t}", f"v_lshlrev_b32 v{t+1}, 2, v{t+1}",
          f"v_sub_u32 v{t}, v{t}, v{t+1}"] + [f"v_mov_b32 v{NEGM[1]+r}, {hex(f2u(-1e30))}" for r in range(16)]
    cm = []
    for r0 in (0, 8):
        c = [f"v_cmp_gt_i32 {s(MSK[r-r0], 2)}, {(r & 3) + 8 * (r >> 2)}, v{t}" for r in range(r0, r0 + 8)]
        c += [f"v_cndmask_b32 v{NEGM[0]+r}, 0, v{NEGM[1]}, {s(MSK[r-r0], 2)}" for r in range(r0, r0 + 8)]
        cm.append(c)
    c1 = [f"s_lshl_b32 s{S_W4}, s{PW}, 12", f"v_add_u32 v{V_DMA[0]}, s{S_W4}, v{VL}", f"v_add_u32 v{V_DMA[1]}, 0x4000, v{V_DMA[0]}",
          f"v_mov_b32 v{V_LDS[0]}, v{VL}", f"v_add_u32 v{V_LDS[1]}, 0x10000, v{VL}",
          f"s_mov_b32 s{S_THR}, {hex(f2u(2.0 ** opts.get('thr_log2', 14)))}"] + srd(SC, P_WS, WS_CTX, 0x1000000)
    c1 += [f"s_lshl_b32 s{S_KOFF}, s{S_I}, 15", f"s_mov_b32 s{S_KOFF2}, s{S_KOFF}", f"s_mov_b32 s{S_VOFF}, s{S_KOFF}", f"s_mov_b32 s{S_VOFF2}, s{S_KOFF}",
           f"s_lshl_b32 s{S_NSH}, s{S_I}, 1", f"s_add_u32 s{S_SHE}, s{S_NSH}, 1", f"s_mov_b32 s{S_TK}, 1", f"s_mov_b32 s{S_NXT}, 0", f"s_mov_b32 s{S_T}, 1"]
    c2 = [f"s_lshl_b32 s3, s{S_I}, 2", f"s_add_u32 s3, s3, s{PW}", "s_lshl_b32 s4, s3, 18", f"s_lshl_b32 s5, s{S_HEAD}, 13", f"s_add_u32 s{S_COFF}, s4, s5",
          "s_lshl_b32 s4, s3, 8", f"s_lshl_b32 s5, s{S_HEAD}, 3", "s_add_u32 s4, s4, s5", f"s_add_u32 s{S_CFL}, s4, {FL_CTX}",
          f"v_mov_b32 {v(LTOT)}, 0", f"v_mov_b32 {v(LTOT+1)}, 0"] + [f"v_mov_b32 {v(P23 + r)}, 0" for r in range(4)]
    return [c0, cm[0], cm[1], c1, c2]

def softmax_items(par, hf, first_half):
    seq = []; pend = None; tcur = 0
    started = {0: not first_half, 1: not first_half}
    for jj in (0, 1):
        j = hf * 2 + jj
        sb = S(par, j)
        for q in range(8):
            dst = P(par, j, q // 4) + (q % 4)
            t0 = TMP + tcur * 2; t1 = t0 + 1
            tcur = (tcur + 1) % 3
            e0 = f"v_exp_f32 {v(t0)}, {v(sb + 2*q)}"
            e1 = f"v_exp_f32 {v(t1)}, {v(sb + 2*q + 1)}"
            if pend is None:
                seq += [e0, e1]
            else:
                p0, p1, pd, prb = pend
                lt = LT + prb
                if not started[prb]:
                    seq += [e0, f"v_add_f32 {v(lt)}, {v(p0)}, {v(p1)}", e1, f"v_cvt_pk_bf16_f32 {v(pd)}, {v(p0)}, {v(p1)}"]
                    started[prb] = True
                else:
                    seq += [e0, f"v_add_f32 {v(lt)}, {v(lt)}, {v(p0)}", e1, f"v_add_f32 {v(lt)}, {v(lt)}, {v(p1)}",
                            f"v_cvt_pk_bf16_f32 {v(pd)}, {v(p0)}, {v(p1)}"]
            pend = (t0, t1, dst, jj)
    p0, p1, pd, prb = pend
    lt = LT + prb
    seq += [f"v_add_f32 {v(lt)}, {v(lt)}, {v(p0)}", f"v_cvt_pk_bf16_f32 {v(pd)}, {v(p0)}, {v(p1)}", f"v_add_f32 {v(lt)}, {v(lt)}, {v(p1)}"]
    return seq

def lds_read(slot, i, tag):
    return f"ds_read_b128 {a(F(i),4)}, {v(V_LDS[slot >> 1])} offset:{(slot & 1) * SLOT + i * 1024} ; RD:{tag}{i}"

def dma_items(slot, srd_, soff, tag="kvs"):
    it = []
    for half in (0, 1):
        it.append([f"s_add_u32 m0, s{S_W4}, {slot * SLOT + half * 16384}"])
        for j in range(4):
            it.append([f"buffer_load_dwordx4 {v(V_DMA[half])}, {s(srd_,4)}, {s(soff + half)} offen offset:{j*1024} lds ; VM:{tag}"])
    return it

def qk_mfmas(parn, sh, rb=0, masked=False):
    m = []
    if sh:
        for kh in (0, 1):
            for ds in range(8):
                for r in (0, 1):
                    d = v(S(parn, kh * 2 + r), 16)
                    m.append(f"{MF} {d}, {a(F(kh*8+ds),4)}, {a(Q(r,ds),4)}, {v(NEGM[r], 16) if ds == 0 else d}")
    else:
        for j in range(4):
            for ds in range(8):
                d = v(S(parn, j), 16)
                base = f"{MF} {d}, {a(F(j*8+ds),4)}, {a(Q(rb,ds),4)}, "
                if ds == 0 and masked:
                    la, lb, lc = newlab("ma"), newlab("mb"), newlab("mc")
                    m.append([f"s_cmp_gt_u32 s{PW}, {j}", f"s_cbranch_scc1 {la}", f"s_cmp_eq_u32 s{PW}, {j} ; ALT", f"s_cbranch_scc1 {lb} ; ALT",
                              base + v(NEGM[1], 16) + " ; ALT", f"s_branch {lc} ; ALT", f"{lb}:", base + v(NEGM[0], 16), f"s_branch {lc} ; ALT",
                              f"{la}:", base + "0 ; ALT", f"{lc}:"])
                else:
                    m.append(base + (v(NEGM[rb], 16) if ds == 0 else d))
    return m

def pv_mfmas(par, sh, rb=0, zero=False):
    m = []
    if sh:
        for ks in range(4):
            for db in range(4):
                for r in (0, 1):
                    d = a(O(r, db), 16)
                    m.append(f"{MF} {d}, {a(F(ks*4+db),4)}, {v(P(par, (ks//2)*2 + r, ks % 2),4)}, {d}")
    else:
        for ks in range(8):
            for db in range(4):
                d = a(O(rb, db), 16)
                m.append(f"{MF} {d}, {a(F(ks*4+db),4)}, {v(P(par, ks//2, ks % 2),4)}, {0 if (zero and ks == 0) else d}")
    return m

ADV = [[f"s_mov_b32 s{S_VOFF}, s{S_KOFF}", f"s_mov_b32 s{S_VOFF2}, s{S_KOFF2}", f"s_add_u32 s{S_TK}, s{S_TK}, 1"],
       [f"s_cmp_ge_u32 s{S_TK}, 17", f"s_cselect_b32 s{S_KOFF}, {OOB}, s{S_NXT}"],
       [f"s_cmp_le_u32 s{S_TK}, s{S_SHE}", f"s_cselect_b32 s{S_KOFF2}, {OOB}, s{S_KOFF}", f"s_cselect_b32 s3, 1, 2"],
       [f"s_lshl_b32 s3, s3, 14", f"s_add_u32 s{S_NXT}, s{S_NXT}, s3"]]

def phase(sh, mf, valu, cur_slot, nxt_slot, dma_prev, dma_new, extra=(), opts={}, vm=16, flows=None, after_bar=()):
    fixed = []
    if sh:
        bar = 16
        pre = {0: ["WAITL C3"], 8: ["WAITL C7"]}
        rpos1 = [0, 1, 3, 4, 6, 7, 9, 10]
        rpos2 = [16, 18, 20, 22, 24, 26, 28, 30]
        dpos1 = [1, 2, 5, 8, 11, 12, 13, 14, 15]
        dpos2 = [16, 17, 21, 25, 29]
    else:
        bar = 24
        pre = {0: ["WAITL C3"], 4: ["WAITL C7"], 8: ["WAITL C11"], 12: ["WAITL C15"], 16: ["WAITL C19"], 20: ["WAITL C23"]}
        rpos1 = [0, 0, 1, 2, 3, 4, 5, 5, 6, 7, 8, 9, 10, 10, 11, 12, 13, 14, 15, 15, 16, 17, 18, 19]
        rpos2 = [24, 25, 26, 27, 28, 29, 30, 31]
        dpos1 = [1, 3, 8, 13, 18, 20, 21, 22, 23]
        dpos2 = [24, 25, 27, 29, 31] + [31] * 12
    pre[bar] = [f"s_waitcnt vmcnt({vm}) lgkmcnt(0)", "s_barrier"] + list(after_bar)
    for i, p in enumerate(rpos1): fixed.append((p, [lds_read(cur_slot, 8 + i, "C")]))
    if nxt_slot is not None:
        for i in range(8): fixed.append((rpos2[i], [lds_read(nxt_slot, i, "N")]))
    dp = list(dma_prev) + list(extra)
    assert len(dp) <= len(dpos1) and len(dma_new) <= len(dpos2)
    for p, it in zip(dpos1, dp): fixed.append((p, it))
    for p, it in zip(dpos2, dma_new): fixed.append((p, it))
    fl = flows if flows is not None else [(list(valu), 0, 32)]
    out, load = schedule(mf, fixed, fl, dma_cost=opts.get("dma_cost", 2.5), pre=pre)
    if opts.get("verbose"): print(load)
    prefix = [lds_read(cur_slot, i, "C") for i in range(8)]
    return fix_m0(resolve_lgkm(out, prefix))

CHK = [f"v_max_f32 {v(VCHK)}, {v(LT)}, {v(LT+1)}", f"v_cmp_lt_f32 vcc, {s(S_THR)}, {v(VCHK)}"]
def lacc(sh, rb=0):
    if sh: return [f"v_add_f32 {v(LTOT)}, {v(LTOT)}, {v(LT)}", f"v_add_f32 {v(LTOT+1)}, {v(LTOT+1)}, {v(LT+1)}"]
    return [f"v_add_f32 {v(LTOT+rb)}, {v(LTOT+rb)}, {v(LT)}", f"v_add_f32 {v(LTOT+rb)}, {v(LTOT+rb)}, {v(LT+1)}"]

def phA(par, sh, opts):
    pn = par ^ 1
    return phase(sh, qk_mfmas(pn, sh), softmax_items(par, 1, False) + CHK, 2 * pn, 2 * par + 1,
                 dma_items(2 * pn + 1, SV, S_VOFF)[5:], dma_items(2 * pn, SK, S_KOFF)[:5], extra=ADV, opts=opts)
def phB(par, sh, opts):
    pn = par ^ 1
    return phase(sh, pv_mfmas(par, sh), lacc(sh) + softmax_items(pn, 0, True), 2 * par + 1, 2 * par,
                 dma_items(2 * pn, SK, S_KOFF)[5:], dma_items(2 * par + 1, SV, S_VOFF)[:5], opts=opts)

def xhalf(op, regs, tmps):
    L = [f"v_mov_b32 {v(t)}, {v(r)}" for r, t in zip(regs, tmps)]
    L.append("s_nop 1")
    L += [f"v_permlane32_swap_b32 {v(r)}, {v(t)}" for r, t in zip(regs, tmps)]
    L.append("s_nop 1")
    L += [f"{op} {v(r)}, {v(r)}, {v(t)}" for r, t in zip(regs, tmps)]
    return L

def tilemax(par, j, dst, first):
    b = S(par, j)
    L = []
    if first:
        L.append(f"v_max3_f32 {v(dst)}, {v(b)}, {v(b+1)}, {v(b+2)}")
        L += [f"v_max3_f32 {v(dst)}, {v(dst)}, {v(b+k)}, {v(b+k+1)}" for k in range(3, 15, 2)]
        L.append(f"v_max_f32 {v(dst)}, {v(dst)}, {v(b+15)}")
    else:
        L += [f"v_max3_f32 {v(dst)}, {v(dst)}, {v(b+k)}, {v(b+k+1)}" for k in range(0, 16, 2)]
    return L

def rare(par):
    pn = par ^ 1
    L = [f"K2_rare{par}:", "s_nop 15"]
    for j in range(4): L += tilemax(par, j, T + (j & 1), j < 2)
    L += xhalf("v_max_f32", [T, T + 1], [T + 2, T + 3])
    L += [f"v_max_f32 {v(T)}, 0, {v(T)}", f"v_max_f32 {v(T+1)}, 0, {v(T+1)}", f"v_max_f32 {v(T+2)}, {v(T)}, {v(T+1)}",
          f"s_sub_u32 s3, s{S_T}, 2", f"s_cmp_lt_u32 s3, s{S_NSH}", "s_cselect_b64 vcc, -1, 0",
          f"v_cndmask_b32 {v(T)}, {v(T+2)}, {v(T)}, vcc",
          f"v_cndmask_b32 {v(T+3)}, 0, {v(T+1)}, vcc",
          f"v_cndmask_b32 {v(T+1)}, {v(T+2)}, {v(T+1)}, vcc",
          f"s_cmp_lt_u32 s{S_T}, s{S_SHE}", "s_cselect_b64 vcc, -1, 0",
          f"v_cndmask_b32 {v(T+4)}, {v(T)}, {v(T+3)}, vcc",
          f"v_exp_f32 {v(T+5)}, -{v(T)}", f"v_exp_f32 {v(T+6)}, -{v(T+3)}"]
    for j in range(4):
        for r in range(16):
            L.append(f"v_sub_f32 {v(S(par,j)+r)}, {v(S(par,j)+r)}, {v(T + (j & 1))}")
            L.append(f"v_sub_f32 {v(S(pn,j)+r)}, {v(S(pn,j)+r)}, {v(T + 4 if j & 1 else T)}")
    for rb in (0, 1):
        for r in range(16): L.append(f"v_sub_f32 {v(NEGM[rb]+r)}, {v(NEGM[rb]+r)}, {v(T + 3*rb)}")
        L.append(f"v_mul_f32 {v(LTOT+rb)}, {v(LTOT+rb)}, {v(T+5+rb)}")
        for r0 in range(0, 64, 8):
            for r in range(8): L.append(f"v_accvgpr_read_b32 {v(T+8+r)}, {a(rb*64 + r0 + r)}")
            for r in range(8): L.append(f"v_mul_f32 {v(T+8+r)}, {v(T+8+r)}, {v(T+5+rb)}")
            for r in range(8): L.append(f"v_accvgpr_write_b32 {a(rb*64 + r0 + r)}, {v(T+8+r)}")
    L += softmax_items(par, 0, True) + softmax_items(par, 1, False)
    L += ["s_nop 1"]
    if par == 0: L += [f"s_cmp_eq_u32 s{S_T}, 16", "s_cbranch_scc1 K2_retf"]
    L += [f"s_branch K2_rets{par}"]
    return L

def o_epilogue(rb, soff):
    L = xhalf("v_add_f32", [LTOT + rb], [T])
    L += [f"v_rcp_f32 {v(T+16)}, {v(LTOT+rb)}", f"s_add_u32 s4, {soff}, 4096"]
    for f in range(8):
        b = T + (f & 1) * 8
        L += [f"v_accvgpr_read_b32 {v(b+r)}, {a(rb*64 + f*8 + r)}" for r in range(8)]
        L += [f"v_pk_mul_f32 {v(b+r,2)}, {v(b+r,2)}, {v(T+16,2)} op_sel_hi:[1,0]" for r in range(0, 8, 2)]
        L += [f"v_cvt_pk_bf16_f32 {v(b+q)}, {v(b+2*q)}, {v(b+2*q+1)}" for q in range(4)]
        L.append(f"buffer_store_dwordx4 {v(b,4)}, v{VL}, {s(SC,4)}, {soff if f < 4 else 's4'} offen offset:{(f%4)*1024} {WT}")
    return L

def wflag(soff): return [f"buffer_store_dwordx2 v[{VN}:{VN+1}], off, {s(SFL,4)}, {soff} {WT}"]

def attention(opts, slow, chk, fin_extra):
    L = stamp(opts, 7)
    zm = [[f"{MF} {a(O(0,db),16)}, {v(P23,4)}, {v(P23,4)}, 0"] for db in range(4)]
    kvd = dma_items(1, SV, S_VOFF, "V0")
    f0, kvd = fold_m0(kvd)
    L += [lds_read(0, i, "C") for i in range(8)] + flat(zm) + f0
    mx0 = tilemax(0, 0, T, True) + tilemax(0, 1, T, False)
    P1 = phase(False, qk_mfmas(0, False, 1, True), [], 0, 2, [], [], opts=opts, vm=8,
               flows=[(kvd, 0, 17), (mx0[:8], 12, 20), (mx0[8:], 20, 28), (ADV + dma_items(0, SK, S_KOFF) + dma_items(3, SV, S_VOFF)[:5], 24, 32)])
    def sub(par, j, src): return [f"v_sub_f32 {v(S(par,j)+r)}, {v(S(par,j)+r)}, {v(src)}" for r in range(16)]
    v2 = tilemax(0, 2, T, False) + tilemax(0, 3, T, False) + [xhalf("v_max_f32", [T], [T + 1])]
    s0a = softmax_items(0, 0, True); s0b = softmax_items(0, 1, False)
    v2 += sub(0, 0, T) + sub(0, 1, T) + s0a + sub(0, 2, T) + sub(0, 3, T) + s0b
    mx1 = tilemax(1, 0, T + 2, True) + tilemax(1, 1, T + 2, False)
    P2 = phase(False, qk_mfmas(1, False, 0, True), [], 2, 1, dma_items(3, SV, S_VOFF)[5:], dma_items(2, SK, S_KOFF)[:5], extra=ADV, opts=opts,
               flows=[(v2, 1, 32)])
    v3 = lacc(False, 1) + mx1 + tilemax(1, 2, T + 2, False) + tilemax(1, 3, T + 2, False) + [xhalf("v_max_f32", [T + 2], [T + 3])]
    v3 += sub(1, 0, T + 2) + sub(1, 1, T + 2) + softmax_items(1, 0, True) + sub(1, 2, T + 2) + sub(1, 3, T + 2)
    v3 += [f"v_sub_f32 {v(NEGM[0]+r)}, 0, {v(T+2)}" for r in range(16)] + [f"v_sub_f32 {v(NEGM[1]+r)}, 0, {v(T)}" for r in range(16)]
    B0 = phase(False, pv_mfmas(0, False, 1, True), v3, 1, 0, dma_items(2, SK, S_KOFF)[5:], dma_items(1, SV, S_VOFF)[:5], opts=opts)
    Pr = P1 + ["s_nop 1"] + P2 + ["s_nop 1"] + B0 + ["s_nop 1"]
    L += Pr + stamp(opts, 8)
    ph = {(k, par, sh): (phA if k == "A" else phB)(par, sh, opts) for k in "AB" for par in (0, 1) for sh in (0, 1)}
    loE = ["s_nop 7", "s_nop 3"] + o_epilogue(1, f"s{S_COFF}")
    if opts.get("pf_later", 1):
        loE += [f"v_lshlrev_b32 v{T}, 1, v{VL}", "s_lshl_b32 s3, s2, 2", f"s_add_u32 s3, s3, s{PW}", "s_lshl_b32 s3, s3, 11"]
        for n, (pr, sz) in enumerate(((P_WG, 512*3584), (P_WU, 512*3584))):
            loE += srd(24, pr, 0, sz) + [f"buffer_load_dword v{VDUMP}, v{T}, {s(24,4)}, s3 offen"]
    L += [".p2align 6", "K2_loop:"]
    for par in (1, 0):
        L += [f"s_cmp_lt_u32 s{S_T}, s{S_SHE}", f"s_cbranch_scc0 K2_Asi{par}"] + ph["A", par, 1] + [f"s_branch K2_Aend{par}", f"K2_Asi{par}:"] + ph["A", par, 0]
        L += [f"K2_Aend{par}:", f"s_cbranch_vccnz K2_rare{par}", f"K2_rets{par}:",
              f"s_sub_u32 s3, s{S_T}, 2", f"s_cmp_lt_u32 s3, s{S_NSH}", f"s_cbranch_scc0 K2_Bsi{par}"] + ph["B", par, 1] + \
             [f"s_branch K2_Bend{par}", f"K2_Bsi{par}:"] + ph["B", par, 0] + [f"K2_Bend{par}:"]
        if par == 1:
            L += [f"s_cmp_eq_u32 s{S_T}, s{S_SHE}", "s_cbranch_scc1 K2_loE", "K2_loEr:",
                  f"s_sub_u32 s3, s{S_T}, 2", f"s_cmp_lg_u32 s3, s{S_SHE}", "s_cbranch_scc1 K2_nf"] + wflag(f"s{S_CFL}") + ["K2_nf:"]
            L += [f"s_add_u32 s{S_T}, s{S_T}, 1", f"s_cmp_eq_u32 s{S_T}, 16", "s_cbranch_scc1 K2_fin"]
        else:
            L += [f"s_add_u32 s{S_T}, s{S_T}, 1", "s_branch K2_loop"]
    L += ["K2_loE:"] + loE + ["s_branch K2_loEr"]
    Fn = ["K2_fin:"] + stamp(opts, 9)
    Fn += ["s_waitcnt vmcnt(12)", "s_barrier"]
    Fn += [lds_read(1, i, "C") for i in range(8)]
    Fn += softmax_items(0, 1, False) + CHK + ["s_cbranch_vccnz K2_rare0", "K2_retf:"]
    Fn += [f"s_cmp_lg_u32 s{S_I}, 7", "s_cbranch_scc1 K2_nf2", "s_waitcnt vmcnt(0)"] + wflag(f"s{S_CFL}") + ["K2_nf2:"]
    Fn += [f"s_sub_u32 s3, 15, s{S_NSH}", "s_lshl_b32 s4, s3, 20", f"s_add_u32 s{S_COFF}, s{S_COFF}, s4", "s_lshl_b32 s4, s3, 10", f"s_add_u32 s{S_CFL}, s{S_CFL}, s4"]
    Fb = phase(False, pv_mfmas(0, False), lacc(False), 1, None, [], [], opts=opts, vm=0, flows=[(lacc(False), 0, 4), (fin_extra[0], 2, 23), (fin_extra[1], 24, 32)])
    Fn += Fb + stamp(opts, 10) + ["s_nop 7", "s_nop 3"] + o_epilogue(0, f"s{S_COFF}") + stamp(opts, 16)
    L += Fn
    r0 = rare(0); r1 = rare(1)
    slow += r0 + r1
    for a1 in (0, 1):
        for b1 in (0, 1):
            chk.append((f"l{a1}{b1}", ph["A", 1, a1] + ph["B", 1, b1] + ph["A", 0, a1] + ph["B", 0, b1] + ph["A", 1, a1]))
            chk.append((f"m{a1}{b1}", ph["B", 1, a1] + ph["A", 0, b1] + r0 + ph["B", 0, a1] + ph["A", 1, b1] + r1 + ph["B", 1, a1]))
        chk.append((f"pr{a1}", Pr + ph["A", 1, a1]))
        chk.append((f"lo{a1}", ph["B", 1, a1] + loE + ph["A", 0, 0]))
        chk.append((f"fn{a1}", ph["B", 1, a1] + Fn))
    chk.append(("rf", r0 + Fn[Fn.index("K2_retf:"):]))
    return L

HRES = 228

def skinny(kind, opts, slow, publish):
    P_ = f"K{kind}"
    NKS = 256 if kind == 3 else 112
    KW = NKS // 4; NU = KW // 2
    RING = 10
    WREG = RING * 4096
    WD = RING - 1
    BD = 7
    ED = opts.get("k3_ed", 32) if kind == 3 else BD
    SB0 = 20 if kind == 3 else 40
    L = []; E = L.append
    WFR = lambda buf, ks, nb: 64 + buf * 16 + (ks * 2 + nb) * 4
    def BF(u, ks, tb):
        if kind == 3:
            return a((64 + (u * 2 + ks) * 4) % 256, 4) if tb == 0 else v(128 + ((u % 8) * 2 + ks) * 4, 4)
        return a(((u * 2 + ks) * 2 + tb) * 4, 4)
    VD = 100; VT = 104; RES = 108; T = 192; VRM = 120
    SW, SB_, SR, SO, SST, SCI, SCO = 8, 12, 16, 20, 24, 28, 32
    S_RT, S_CT, S_WO, S_B0, S_B1, S_LB = 41, 42, 43, 44, 45, 46
    lane = T + 20
    setup = []
    G = setup.append
    G(f"v_lshrrev_b32 v{lane}, 4, v{VL}")
    setup += map3(S_RT, S_CT)
    G(f"v_lshrrev_b32 v{T}, 3, v{lane}")
    G(f"v_and_b32 v{T+3}, 7, v{lane}")
    G(f"v_lshrrev_b32 v{T+4}, 5, v{lane}")
    G(f"s_mul_i32 s{S_LB}, s{PW}, {WREG}")
    G(f"v_add_u32 v{VT}, s{S_LB}, v{VL}")
    setup += srd(SW, P_WS, WS_WOF if kind == 3 else WS_WDF, 8 * NKS * 2048)
    G(f"s_mul_i32 s{S_WO}, s{PW}, {KW * 2048}")
    G(f"s_mul_i32 s3, s{S_CT}, {NKS * 2048}")
    G(f"s_add_u32 s{S_WO}, s{S_WO}, s3")
    G(f"s_mul_i32 s{S_B0}, s{S_RT}, {NKS * 1024}")
    G(f"s_mul_i32 s3, s{PW}, {KW * 1024}")
    G(f"s_add_u32 s{S_B0}, s{S_B0}, s3")
    G(f"s_add_u32 s{S_B1}, s{S_B0}, {32 * NKS * 1024}")
    G(f"v_and_b32 v{T+8}, 31, v{lane}")
    G(f"v_lshlrev_b32 v{T+8}, 10, v{T+8}")
    G(f"v_lshl_add_u32 v{VRM}, v{T+4}, 4, v{T+8}")
    G(f"s_and_b32 s3, s{PW}, 1")
    G(f"s_lshl_b32 s3, s3, 5")
    G(f"s_add_u32 s48, s3, s{S_RT}")
    G(f"s_lshr_b32 s3, s{PW}, 1")
    G(f"s_lshl_b32 s4, s{S_CT}, 1")
    G(f"s_add_u32 s49, s3, s4")
    G(f"s_lshl_b32 s50, s48, 15")
    G(f"s_lshl_b32 s3, s49, 6")
    G(f"s_add_u32 s51, s50, s3")
    G(f"s_lshl_b32 s3, s49, 11")
    G(f"s_add_u32 s50, s50, s3")
    if kind == 3:
        G(f"s_lshl_b32 s53, s{S_RT}, 8"); G(f"s_lshl_b32 s3, s{PW}, 6"); G("s_add_u32 s53, s53, s3"); G(f"s_add_u32 s53, s53, {FL_CTX}")
        G(f"s_add_u32 s52, s53, {32 * 256}")
        setup += poll_issue(SFL, "s53", 8, "pe")
    else:
        G(f"s_lshr_b32 s3, s{S_RT}, 1")
        G(f"s_lshl_b32 s52, s3, 7"); G(f"s_add_u32 s52, s52, {FL_HH}")
    if kind == 5:
        L += setup + publish
        L += srd(SB_, P_WS, WS_HH, 64 * NKS * 1024)
    L += stamp(opts, SB0)
    def wl(u):
        it = [[f"s_add_u32 m0, s{S_LB}, {(u % RING) * 4096}"]]
        for q in range(4):
            it.append([f"buffer_load_dwordx4 v{VL}, {s(SW,4)}, s{S_WO} offen offset:{q*1024} lds ; VM:W{u}"])
        it[-1].append(f"s_add_u32 s{S_WO}, s{S_WO}, 4096")
        return it
    def bl(u, tb):
        it = []
        for ks in range(2):
            it.append([f"buffer_load_dwordx4 {BF(u,ks,tb)}, v{VL}, {s(SB_,4)}, s{S_B0+tb} offen offset:{((u % 2) * 2 + ks) * 1024} ; VM:B{tb}_{u}"])
        if u % 2 == 1: it[-1].append(f"s_add_u32 s{S_B0+tb}, s{S_B0+tb}, 4096")
        return it
    if kind == 3:
        NW0 = 2
        first = wl(0) + wl(1)
        ctx_prefix = setup + flat(first) + ["buffer_store_dwordx4 CTX ; VM:ctx"] * 8
        L += poll_check(SFL, "s53", "pe", slow=slow)
        for u in range(2): L += flat(bl(u, 0))
        L += ["WAITV ctx"] + publish
        E("s_cmp_ge_u32 s2, 224")
        E(f"s_cbranch_scc1 {P_}_nocs1")
        E("s_mul_i32 s3, s2, 1171"); E("s_lshr_b32 s3, s3, 16"); E("s_mul_i32 s4, s3, 56"); E("s_sub_u32 s4, s2, s4")
        E("s_cmp_ge_u32 s4, 28")
        E(f"s_cselect_b32 s{SCI}, s{P_WU}, s{P_WG}")
        E(f"s_cselect_b32 s{SCI+1}, s{P_WU+1}, s{P_WG+1}")
        E(f"s_mov_b32 s{SCI+2}, {512 * 3584}")
        E(f"s_mov_b32 s{SCI+3}, 0x00020000")
        E("s_cselect_b32 s5, 28, 0"); E("s_sub_u32 s5, s4, s5"); E("s_lshl_b32 s5, s5, 7")
        E("s_lshl_b32 s3, s3, 2"); E(f"s_add_u32 s3, s3, s{PW}")
        E(f"s_mul_i32 s6, s3, {32 * 3584}"); E("s_add_u32 s5, s5, s6")
        E(f"s_mul_i32 s47, s3, {3584 * 4}"); E("s_lshl_b32 s4, s4, 8"); E("s_add_u32 s47, s47, s4")
        E(f"v_mul_u32_u24 v{T+8}, 3584, v{T}")
        E(f"v_lshl_add_u32 v{T+8}, v{T+3}, 4, v{T+8}")
        for i in range(4):
            E(f"buffer_load_dwordx4 {v(i*4, 4)}, v{T+8}, {s(SCI,4)}, s5 offen")
            if i < 3: E(f"s_add_u32 s5, s5, {8 * 3584}")
        E(f"{P_}_nocs1:")
        for u in range(2, 4): L += flat(wl(u) + bl(u, 0))
        L += srd(SR, P_X, 0, 0x200000)
        L += srd(SO, P_WS, WS_H, 0x200000)
        L += srd(SST, P_WS, WS_ST, 0x40000)
        L += srd(SCO, P_WS, WS_CS, 16 * 3584 * 4)
        E("s_cmp_ge_u32 s2, 224")
        E(f"s_cbranch_scc1 {P_}_nocs2")
        E("WAITV cs")
        C = 20
        for j in range(4):
            E(f"v_lshlrev_b32 v{C+2*j}, 16, v{j}")
            E(f"v_and_b32 v{C+2*j+1}, 0xffff0000, v{j}")
        for i in range(1, 4):
            for j in range(4):
                E(f"v_lshlrev_b32 v{C+8}, 16, v{i*4+j}")
                E(f"v_and_b32 v{C+9}, 0xffff0000, v{i*4+j}")
                E(f"v_add_f32 v{C+2*j}, v{C+2*j}, v{C+8}")
                E(f"v_add_f32 v{C+2*j+1}, v{C+2*j+1}, v{C+9}")
        E("s_nop 1")
        for j in range(8): E(f"v_add_f32_dpp v{C+j}, v{C+j}, v{C+j} row_ror:8 row_mask:0xf bank_mask:0xf")
        for sw in ("v_permlane16_swap_b32", "v_permlane32_swap_b32"):
            for j in range(8): E(f"v_mov_b32 v{C+8+j}, v{C+j}")
            E("s_nop 1")
            for j in range(8): E(f"{sw} v{C+j}, v{C+8+j}")
            E("s_nop 1")
            for j in range(8): E(f"v_add_f32 v{C+j}, v{C+j}, v{C+8+j}")
        E(f"v_lshlrev_b32 v{C+8}, 1, v{VL}")
        E("s_mov_b64 exec, 0xff")
        E(f"buffer_store_dwordx4 {v(C,4)}, v{C+8}, {s(SCO,4)}, s47 offen {WT} ; VMX")
        E(f"buffer_store_dwordx4 {v(C+4,4)}, v{C+8}, {s(SCO,4)}, s47 offen offset:16 {WT} ; VMX")
        E("s_mov_b64 exec, -1")
        E(f"{P_}_nocs2:")
        E(f"buffer_load_dwordx4 {v(RES,4)}, v{VRM}, {s(SR,4)}, s51 offen")
        E(f"buffer_load_dwordx4 {v(RES+4,4)}, v{VRM}, {s(SR,4)}, s51 offen offset:32")
        for u in range(4, ED):
            if u < WD: L += flat(wl(u))
            L += flat(bl(u, 0))
        L += poll_issue(SFL, "s52", 8, "pl") + stamp(opts, SB0 + 1) + poll_check(SFL, "s52", "pl", slow=slow)
        L += stamp(opts, SB0 + 2)
        for u in range(BD): L += flat(bl(u, 1))
    else:
        for u in range(WD): L += flat(wl(u))
        L += srd(SO, P_OUT, 0, 0x200000)
        L += poll_issue(SFL, "s52", 16, "pl") + stamp(opts, SB0 + 1) + poll_check(SFL, "s52", "pl", slow=slow)
        L += stamp(opts, SB0 + 2)
        for u in range(BD): L += flat(bl(u, 0) + bl(u, 1))
    def treads(u):
        return [f"ds_read_b128 {v(WFR(u&1,i//2,i%2), 4)}, v{VT} offset:{(u % RING)*4096 + i*1024}" for i in range(4)]
    L += ["WAITV W0"] + treads(0)
    for u in range(NU):
        mf = []
        for ks in range(2):
            for nb in range(2):
                for tb in range(2):
                    d = v((nb * 2 + tb) * 16, 16)
                    mf.append(f"{MF} {d}, {v(WFR(u&1,ks,nb),4)}, {BF(u,ks,tb)}, {d if (u or ks) else 0}")
        need = [f"B0_{u}", f"B1_{u}"] + ([f"W{u+1}"] if u + 1 < NU else [])
        pre = {0: [f"WAITV {','.join(need)} L0"]}
        fixed = []
        if u + 1 < NU:
            rd = treads(u + 1)
            fixed += [(i, [rd[i]]) for i in range(4)]
        ex = []
        if u + BD < NU: ex += bl(u + BD, 1)
        if u + ED < NU: ex += bl(u + ED, 0)
        if u + WD < NU:
            f0, it = fold_m0(wl(u + WD)); pre[0] = f0 + pre[0]; ex += it
        fixed += [(i, e) for i, e in enumerate(ex)]
        out, _ = schedule(mf, fixed, [], pre=pre)
        L += out
        if u % 4 == 3: L += stamp(opts, SB0 + 3 + u // 4)
    G = E
    G(f"v_add_u32 v{T}, s{S_LB}, v{VL}")
    G(f"s_lshl_b32 s3, s{PW}, 12")
    G(f"v_add_u32 v{T+1}, s3, v{VL}")
    G(f"v_add_u32 v{T+2}, {2 * WREG}, v{T+1}")
    G("s_nop 7"); G("s_nop 1")
    for i in range(16): G(f"ds_write_b128 v{T}, {v(i*4, 4)} offset:{i*1024}")
    G("s_waitcnt vmcnt(0) lgkmcnt(0)")
    G("s_barrier")
    for src in range(4):
        for i in range(4):
            G(f"ds_read_b128 {v(src*16 + i*4, 4)}, v{T + 1 + src//2} offset:{(src%2)*WREG + i*1024} ; RD:x{src}_{i}")
    if kind == 3:
        L += flag_set(fo_cs(), "s3")
        G(f"v_permlane32_swap_b32 v{RES}, v{RES+2}"); G(f"v_permlane32_swap_b32 v{RES+1}, v{RES+3}")
        G(f"v_permlane32_swap_b32 v{RES+4}, v{RES+6}"); G(f"v_permlane32_swap_b32 v{RES+5}, v{RES+7}")
        G("s_nop 1")
    else:
        RES = HRES
    X = 64
    for j in range(8):
        G(f"v_lshlrev_b32 v{X+2*j}, 16, v{RES+j}")
        G(f"v_and_b32 v{X+2*j+1}, 0xffff0000, v{RES+j}")
    G("WAITL x1_3")
    for r in range(0, 16, 2): G(f"v_pk_add_f32 {v(r,2)}, {v(r,2)}, {v(16+r,2)}")
    G("WAITL x3_3")
    for r in range(0, 16, 2): G(f"v_pk_add_f32 {v(32+r,2)}, {v(32+r,2)}, {v(48+r,2)}")
    for r in range(0, 16, 2): G(f"v_pk_add_f32 {v(r,2)}, {v(r,2)}, {v(32+r,2)}")
    for r in range(0, 16, 2): G(f"v_pk_add_f32 {v(r,2)}, {v(r,2)}, {v(X+r,2)}")
    OUT = HRES if kind == 3 else 16
    for q in range(8): G(f"v_cvt_pk_bf16_f32 v{OUT+q}, v{2*q}, v{2*q+1}")
    if kind == 3:
        G(f"buffer_store_dwordx4 {v(OUT,4)}, v{VL}, {s(SO,4)}, s50 offen {WT}")
        G(f"buffer_store_dwordx4 {v(OUT+4,4)}, v{VL}, {s(SO,4)}, s50 offen offset:1024 {WT}")
        for j in range(8):
            G(f"v_lshlrev_b32 v{X+2*j}, 16, v{OUT+j}")
            G(f"v_and_b32 v{X+2*j+1}, 0xffff0000, v{OUT+j}")
        G(f"v_add_f32 v32, v{X}, v{X+1}")
        G(f"v_mul_f32 v33, v{X}, v{X}")
        G(f"v_fmac_f32 v33, v{X+1}, v{X+1}")
        for j in range(2, 16):
            G(f"v_add_f32 v32, v32, v{X+j}")
            G(f"v_fmac_f32 v33, v{X+j}, v{X+j}")
        G("v_mov_b32 v34, v32"); G("v_mov_b32 v35, v33"); G("s_nop 1")
        G("v_permlane32_swap_b32 v32, v34"); G("v_permlane32_swap_b32 v33, v35"); G("s_nop 1")
        G("v_add_f32 v32, v32, v34"); G("v_add_f32 v33, v33, v35")
        G(f"v_lshrrev_b32 v36, 1, v{VL}")
        G("s_lshl_b32 s3, s48, 12"); G("s_lshl_b32 s4, s49, 8"); G("s_add_u32 s3, s3, s4")
        G("s_mov_b32 exec_hi, 0")
        G(f"buffer_store_dwordx2 v[32:33], v36, {s(SST,4)}, s3 offen {WT}")
        G("s_mov_b32 exec_hi, -1")
        pub = ["s_waitcnt vmcnt(0)", "s_barrier"] + flag_set(fo_h(S_RT, S_CT), "s3")
    else:
        G("s_nop 1")
        G("v_permlane32_swap_b32 v16, v18"); G("v_permlane32_swap_b32 v17, v19")
        G("v_permlane32_swap_b32 v20, v22"); G("v_permlane32_swap_b32 v21, v23")
        G(f"buffer_store_dwordx4 {v(16,4)}, v{VRM}, {s(SO,4)}, s51 offen")
        G(f"buffer_store_dwordx4 {v(20,4)}, v{VRM}, {s(SO,4)}, s51 offen offset:32")
        pub = []
    L += stamp(opts, SB0 + 11)
    if kind == 3:
        R = resolve_vm(ctx_prefix + resolve_lgkm(L))[len(ctx_prefix):]
        return fix_m0(R), pub, setup, first
    return fix_m0(resolve_vm(resolve_lgkm(L))), pub

def phase4(opts, slow, publish):
    L = []; E = L.append
    SUB = 14592; UPOFF = 7168 + 128; STG = 2 * SUB; RING = 5
    CSL = RING * STG
    WF = lambda buf, j: 112 + buf * 28 + j * 4
    HF = lambda ks: ks * 4
    VD = 168; VT = 176; VMEAN = 180; VR2 = 182; T = 184
    SW, SH, SST, SCS, SO = 8, 12, 16, 20, 24
    S_G, S_CT, S_WO, S_HO, S_LB = 54, 55, 56, 57, 58
    lane = T + 40
    E(f"v_lshrrev_b32 v{lane}, 4, v{VL}")
    L += map4(S_G, S_CT)
    for p in range(7):
        E(f"v_add_u32 v{T}, {64*p}, v{lane}")
        E(f"v_mul_u32_u24 v{T+1}, 4682, v{T}")
        E(f"v_lshrrev_b32 v{T+1}, 16, v{T+1}")
        E(f"v_mul_u32_u24 v{T+2}, {3584 - 14*16}, v{T+1}")
        E(f"v_lshl_add_u32 v{T+2}, v{T}, 4, v{T+2}")
        E(f"v_subrev_u32 v{VD+p}, {(p & 3) * 1024}, v{T+2}")
    E(f"v_lshrrev_b32 v{T+4}, 5, v{lane}")
    E(f"v_bfe_u32 v{T+5}, v{lane}, 2, 2")
    E(f"v_lshl_add_u32 v{T+6}, v{T+4}, 2, v{T+5}")
    E(f"v_mul_u32_u24 v{T+6}, 224, v{T+6}")
    E(f"v_bfe_u32 v{T+7}, v{lane}, 1, 1")
    E(f"v_mul_u32_u24 v{T+7}, {UPOFF}, v{T+7}")
    E(f"v_add_u32 v{T+6}, v{T+6}, v{T+7}")
    E(f"v_bfe_u32 v{T+7}, v{lane}, 4, 1")
    E(f"v_lshl_add_u32 v{T+6}, v{T+7}, 4, v{T+6}")
    E(f"v_and_b32 v{T+7}, 1, v{lane}")
    E(f"v_lshl_add_u32 v{VT}, v{T+7}, 3, v{T+6}")
    E(f"v_add_u32 v{VT+1}, {2*STG}, v{VT}")
    E(f"v_add_u32 v{VT+2}, {4*STG}, v{VT}")
    E(f"s_and_b32 s3, s{PW}, 1")
    E("s_cmp_eq_u32 s3, 1")
    E(f"s_cselect_b32 s{SW}, s{P_WU}, s{P_WG}")
    E(f"s_cselect_b32 s{SW+1}, s{P_WU+1}, s{P_WG+1}")
    E(f"s_mov_b32 s{SW+2}, {512*3584}")
    E(f"s_mov_b32 s{SW+3}, 0x00020000")
    E(f"s_cselect_b32 s{S_LB}, {UPOFF}, 0")
    E(f"s_lshr_b32 s5, s{PW}, 1")
    E(f"s_mul_i32 s4, s5, {SUB}")
    E(f"s_add_u32 s{S_LB}, s{S_LB}, s4")
    E(f"s_mul_i32 s{S_WO}, s5, {32*3584}")
    E(f"s_mul_i32 s4, s{S_CT}, 224")
    E(f"s_add_u32 s{S_WO}, s{S_WO}, s4")
    E(f"s_lshl_b32 s5, s5, 5")
    E(f"s_add_u32 s3, s3, s5")
    E(f"s_lshl_b32 s4, s{S_G}, 1")
    E(f"s_add_u32 s59, s3, s4")
    E(f"s_lshl_b32 s{S_HO}, s59, 15")
    L += srd(SH, P_WS, WS_H, 0x200000)
    L += srd(SST, P_WS, WS_ST, 0x40000)
    E(f"s_lshl_b32 s3, s{PW}, 6")
    E(f"v_add_u32 v{T+9}, s3, v{lane}")
    E(f"v_cmp_gt_u32 vcc, 112, v{T+9}")
    E(f"v_add_u32 v{T}, {1792-112}, v{T+9}")
    E(f"v_lshlrev_b32 v179, 2, v{T+9}")
    E(f"v_cndmask_b32 v{T}, v{T}, v{T+9}, vcc")
    E(f"v_lshlrev_b32 v{T}, 2, v{T}")
    E(f"v_add_u32 v179, {CSL}, v179")
    E(f"v_and_b32 v{T+1}, 31, v{lane}")
    E(f"v_lshlrev_b32 v{T+1}, 3, v{T+1}")
    E(f"v_lshl_add_u32 v{T+1}, v{T+4}, 11, v{T+1}")
    E(f"s_lshl_b32 s60, s{S_G}, 7"); E(f"s_add_u32 s60, s60, {FL_H}")
    E(f"s_mov_b32 s61, {FL_CS}")
    L += publish
    L += srd(SCS, P_WS, WS_CS, 16 * 3584 * 4)
    L += srd(SO, P_WS, WS_HH, 64 * 112 * 1024)
    L += stamp(opts, 32)
    def wl(g):
        slot = g % RING
        it = []
        for p in range(7):
            if p % 4 == 0: it.append([f"s_add_u32 m0, s{S_LB}, {slot*STG + p*1024}"])
            it.append([f"buffer_load_dwordx4 v{VD+p}, {s(SW,4)}, s{S_WO} offen offset:{(p&3)*1024} lds ; VM:W{g}"])
        it[-1].append(f"s_add_u32 s{S_WO}, s{S_WO}, {64*3584}")
        return it
    def hl(g):
        it = []
        for ks in range(4):
            it.append([f"buffer_load_dwordx4 {a(HF(g*4+ks),4)}, v{VL}, {s(SH,4)}, s{S_HO} offen offset:{ks*1024} ; VM:H{g}"])
        it[-1].append(f"s_add_u32 s{S_HO}, s{S_HO}, 4096")
        return it
    NW = opts.get("k4_nw", 5)
    for g in range(NW): L += flat(wl(g))
    L += poll_issue(SFL, "s60", 16, "ph") + stamp(opts, 33) + poll_check(SFL, "s60", "ph", slow=slow) + stamp(opts, 34)
    NH = opts.get("k4_nh", 4)
    for g in range(NH): L += flat(hl(g))
    ST = 192
    CS = 208
    stl = [[f"s_lshl_b32 s62, s59, 12"]]
    for i in range(8):
        stl.append([f"buffer_load_dwordx2 {v(ST+i*2,2)}, v{T+1}, {s(SST,4)}, s62 offen offset:{i*256} ; VM:st"])
    csl = [poll_check(SFL, "s61", "pcs", slow=slow) + [f"s_mul_i32 s62, s{S_CT}, 448"]]
    for i in range(16):
        csl.append([f"buffer_load_dword v{CS+i}, v{T}, {s(SCS,4)}, s62 offen ; VM:cs"] + ([f"s_add_u32 s62, s62, {3584*4}"] if i < 15 else []))
    csv = ["WAITV cs"]
    for st in (8, 4, 2, 1):
        for i in range(st): csv.append(f"v_add_f32 v{CS+i}, v{CS+i}, v{CS+i+st}")
    csv.append(f"ds_write_b32 v179, v{CS}")
    stv = ["WAITV st"]
    for st in (8, 4, 2):
        for i in range(st): stv.append(f"v_add_f32 v{ST+i}, v{ST+i}, v{ST+i+st}")
    stv += [[f"v_mov_b32 v{ST+2}, v{ST}", f"v_mov_b32 v{ST+3}, v{ST+1}", "s_nop 1",
            f"v_permlane32_swap_b32 v{ST}, v{ST+2}", f"v_permlane32_swap_b32 v{ST+1}, v{ST+3}", "s_nop 1"],
            f"v_add_f32 v{ST}, v{ST}, v{ST+2}", f"v_add_f32 v{ST+1}, v{ST+1}, v{ST+3}",
            f"v_mul_f32 v{ST}, 0x3b000000, v{ST}", f"v_mul_f32 v{ST+1}, 0x3b000000, v{ST+1}",
            f"v_fma_f32 v{ST+1}, -v{ST}, v{ST}, v{ST+1}", f"v_max_f32 v{ST+1}, 0, v{ST+1}", f"v_add_f32 v{ST+1}, 0x3727c5ac, v{ST+1}",
            f"v_rcp_f32 v{VR2}, v{ST+1}", f"v_sub_f32 v{VMEAN}, 0, v{ST}"]
    def treads(k):
        g = k // 4; slot = g % RING; kk = k % 4
        r = []
        for j in range(7):
            for jj in range(2):
                off = (slot % 2) * STG + (kk // 2) * SUB + ((kk % 2) * 16 + 8 * jj) * 224 + j * 32
                r.append(f"ds_read_b64_tr_b16 {v(WF(k&1,j) + 2*jj, 2)}, v{VT + slot//2} offset:{off} ; RD:k{k}_{j*2+jj}")
        return r
    L += [f"WAITV W{NW-1}", "s_barrier"] + treads(0)
    for k in range(32):
        g = k // 4
        mf = [f"{MF} {v(j*16,16)}, {v(WF(k&1,j),4)}, {a(HF(k),4)}, {v(j*16,16) if k else 0}" for j in range(7)]
        pre = {0: [f"WAITL k{k}_5"], 3: [f"WAITL k{k}_13"]}
        fixed = []; flows = []
        bar = k % 4 == 3 and k < 31 and (g + 1 >= NW or g + RING < 8 or k == 27)
        if k < 31:
            if bar: pre = {0: [f"WAITV W{g+1} L0", "s_barrier"]}
            rd = treads(k + 1)
            pos = [0, 0, 0, 1, 1, 1, 2, 2, 2, 3, 3, 4, 4, 5] if k % 4 == 2 else [i // 2 for i in range(14)]
            fixed += [(pos[i], [rd[i]]) for i in range(14)]
        if k % 4 == 0: pre[0] = [f"WAITV H{g}"] + pre[0]
        ex = []
        if k % 4 == 0:
            gn = None
            if NW == RING and g >= 1 and g - 1 + RING < 8: gn = g - 1 + RING
            if NW < RING and g + NW < 8: gn = g + NW
            if gn is not None:
                f0, it = fold_m0(wl(gn)); pre[0] = f0 + pre[0]; ex = it
        if k % 4 == 1 and g + NH < 8: ex = hl(g + NH)
        if k == 2: ex = stl[:5]
        if k == 3: ex = stl[5:]
        if k == 14: ex = [poll_issue(SFL, "s61", 32, "pcs", addr=[
            f"s_mul_i32 s3, s{S_CT}, 112", "s_lshr_b32 s3, s3, 6", "s_lshl_b32 s3, s3, 2",
            f"v_and_b32 v{VPO}, 15, v{lane}", f"v_min_u32 v{VPO}, 11, v{VPO}", f"v_add_u32 v{VPO}, s3, v{VPO}",
            f"v_bfe_u32 v{VPD}, v{lane}, 4, 1", f"v_mul_u32_u24 v{VPD}, 112, v{VPD}", f"v_add_u32 v{VPO}, v{VPO}, v{VPD}",
            f"v_min_u32 v{VPO}, 223, v{VPO}", f"v_lshlrev_b32 v{VPO}, 3, v{VPO}"])]
        if k == 18: ex = csl[:6]
        if k == 19: ex = csl[6:12]
        if k == 20: ex = csl[12:]
        if k == 10: flows.append((stv, 0, 7))
        if k == 26: flows.append((csv, 0, 7))
        fixed += [(i, e) for i, e in enumerate(ex)]
        out, _ = schedule(mf, fixed, flows, pre=pre)
        L += out
        if k % 8 == 7: L += stamp(opts, 35 + k // 8)
    G = E
    G(f"v_lshlrev_b32 v{T}, 4, v{T+4}")
    G(f"v_add_u32 v{T}, {CSL}, v{T}")
    CB = 112
    def csr(j):
        b = CB + (j % 3) * 16
        return [f"ds_read_b128 {v(b,4)}, v{T} offset:{j*64} ; RD:c{j}_0",
                f"ds_read_b128 {v(b+4,4)}, v{T} offset:{448 + j*64} ; RD:c{j}_1",
                f"ds_read_b128 {v(b+8,4)}, v{T} offset:{j*64 + 32} ; RD:c{j}_2",
                f"ds_read_b128 {v(b+12,4)}, v{T} offset:{448 + j*64 + 32} ; RD:c{j}_3"]
    G("s_nop 3")
    L += csr(0) + csr(1)
    G(f"s_mul_i32 s3, s59, {112*1024}")
    G(f"s_mul_i32 s4, s{S_CT}, {7*1024}")
    G("s_add_u32 s3, s3, s4")
    G("s_add_u32 s4, s3, 4096")
    for j in range(7):
        if j + 2 < 7: L += csr(j + 2)
        G(f"WAITL c{j}_3")
        b = CB + (j % 3) * 16; A_ = j * 16
        for r in range(0, 16, 2):
            G(f"v_pk_fma_f32 {v(A_+r,2)}, {v(b+r,2)}, {v(VMEAN,2)}, {v(A_+r,2)} op_sel_hi:[1,0,1]")
        for r in (0, 2, 8, 10): G(f"v_pk_mul_f32 {v(A_+r,2)}, {v(A_+r,2)}, {v(A_+r+4,2)}")
        for r in (0, 2, 8, 10): G(f"v_pk_mul_f32 {v(A_+r,2)}, {v(A_+r,2)}, {v(VR2,2)} op_sel_hi:[1,0]")
        for q, r in enumerate((0, 2, 8, 10)): G(f"v_cvt_pk_bf16_f32 v{A_+4+q}, v{A_+r}, v{A_+r+1}")
        G(f"buffer_store_dwordx4 {v(A_+4,4)}, v{VL}, {s(SO,4)}, s{3 + j//4} offen offset:{(j%4)*1024} {WT}")
    L += stamp(opts, 39)
    pub = ["s_waitcnt vmcnt(0)", "s_barrier"] + flag_set(fo_hh(S_G, S_CT), "s3")
    return fix_m0(resolve_vm(resolve_lgkm(L))), pub

def gen_fused(opts={}):
    slow = []; chk = []
    MAP3[0] = opts.get('map3', 1)
    L = ["s_cmp_ge_u32 s2, 256", "s_cbranch_scc1 F_done"] + stamp(opts, 0)
    p1 = phase1(opts, slow)
    p3, pub3, setup3, first3 = skinny(3, opts, slow, wflag(f"s{S_CFL}"))
    at = attention(opts, slow, chk, [setup3, first3])
    p4, pub4 = phase4(opts, slow, pub3)
    p5, _ = skinny(5, opts, slow, pub4)
    L += p1 + at + p3 + p4 + p5
    if opts.get("stamps"):
        L += ["s_waitcnt vmcnt(0)"] + stamp(opts, 63)
        L += srd(8, P_WS, WS_STAMP, 0x40000)
        L += [f"v_lshrrev_b32 v254, 2, v{VL}", "s_lshl_b32 s98, s2, 10", f"s_lshl_b32 s99, s{PW}, 8",
              "s_add_u32 s98, s98, s99", "buffer_store_dword v255, v254, s[8:11], s98 offen"]
    L += ["s_endpgm"] + slow + ["F_done:"]
    chk += [("p1", p1 + at[:300]), ("p345", at[-120:] + p3 + p4 + p5)]
    for nm, seq in chk:
        for e in check_hazards(seq, nm): print(e)
    return L

def gen_k3only(opts):
    slow = []
    MAP3[0] = opts.get('map3', 1)
    L = ["s_cmp_ge_u32 s2, 256", "s_cbranch_scc1 X_done",
         "s_load_dwordx16 s[68:83], s[0:1], 0", "s_load_dwordx8 s[84:91], s[0:1], 64", "s_load_dwordx2 s[92:93], s[0:1], 96",
         f"v_and_b32 v{VL}, 63, v0", "v_lshrrev_b32 v1, 6, v0", f"v_lshlrev_b32 v{VL}, 4, v{VL}", f"v_readfirstlane_b32 s{PW}, v1", "s_waitcnt lgkmcnt(0)"]
    L += srd(SFL, P_WS, WS_FL, 32768) + srd(12, P_WS, WS_CTX, 0x1000000)
    L += [f"v_mov_b32 v{VPO}, 0", poll_ld(SFL, "0"), "s_waitcnt vmcnt(0)", f"v_readfirstlane_b32 s{SN}, v{VPD}", f"v_readfirstlane_b32 s{SN+1}, v{VPD+1}",
          f"v_mov_b32 v{VN}, v{VPD}", f"v_mov_b32 v{VN+1}, v{VPD+1}", "s_barrier"] + stamp(opts, 0)
    p3, pub3, setup3, first3 = skinny(3, opts, slow, [])
    p3 = [l.replace("K3_", "X3_") for l in p3]
    if opts.get("nomfma"): p3 = [l for l in p3 if not l.startswith("v_mfma")]
    L += setup3 + ["s_waitcnt vmcnt(0)"] + fix_m0(flat(first3)) + p3
    L += ["s_waitcnt vmcnt(0)"] + stamp(opts, 63)
    L += srd(8, P_WS, WS_STAMP, 0x40000)
    L += [f"v_lshrrev_b32 v254, 2, v{VL}", "s_lshl_b32 s98, s2, 10", f"s_lshl_b32 s99, s{PW}, 8",
          "s_add_u32 s98, s98, s99", "buffer_store_dword v255, v254, s[8:11], s98 offen"]
    L += ["s_endpgm"] + slow + ["X_done:"]
    return L

if __name__ == "__main__":
    import sys
    NAME = "sequential_preLN__compressed_kv_cla__glu_gated_bilinear__prompt"
    opts = eval(sys.argv[2]) if len(sys.argv) > 2 else {}
    hdr = open("cdna_kernels/" + NAME + ".s.ref").read().split("; Override launch")[0]
    if opts.get("aslist", 1):
        hdr += f"; @launch kernel={NAME}_kernel grid=(256,1,1) block=(256,1,1) lds=163840\n"
    else:
        hdr += "; @launch grid=(256,1,1) block=(256,1,1) lds=163840\n"
    extra = ""
    if opts.get("k3only"):
        hdr += "; @launch kernel=x3_kernel grid=(256,1,1) block=(256,1,1) lds=163840\n"
        o2 = dict(opts["k3only"]); o2["stamps"] = 1
        extra = kernel("x3_kernel", gen_k3only(o2))
    open(sys.argv[1], "w").write(hdr + '.amdgcn_target "amdgcn-amd-amdhsa--gfx950"\n' + kernel(NAME + "_kernel", gen_fused(opts)) + extra)
```
